```python
import torch

def _softmax(x, axis=-1):
    return torch.softmax(x, dim=axis)
def _gelu(x):
    return torch.nn.functional.gelu(x, approximate="tanh")
def _silu(x):
    return torch.nn.functional.silu(x)
def _sigmoid(x):
    return torch.sigmoid(x)
def _layernorm(x, axis=-1, eps=1e-5):
    m = x.mean(dim=axis, keepdim=True)
    v = x.var(dim=axis, keepdim=True, unbiased=False)
    return (x - m) / torch.sqrt(v + eps)
def _scatter_add(tgt, idx, src, axis=0):
    return tgt.clone().index_add_(axis, idx, src)
def _segment_sum(src, seg, n):
    out = torch.zeros((n,) + src.shape[1:], dtype=src.dtype)
    return out.index_add_(0, seg, src)
def _pad(x, pw):
    flat = tuple(v for pair in reversed(pw) for v in pair)
    return torch.nn.functional.pad(x, flat)

kernel_name = 'parallel_sum__compressed_kv_cla__dense_activation_silu__decode'

def setup_inputs():

    _w = (lambda a: (lambda t: t.to(torch.bfloat16) if t.is_floating_point() else t)(torch.as_tensor(a)))
    def _A_setup():
        B, H, Sq, Sk, D, M = 2, 32, 1, 4096, 128, 512
        Dc = 4 * D
        return {
            "x": _w((lambda *s: torch.randn(*s, dtype=torch.bfloat16) * 0.05)(B, Sq, M)),
            "c_kv": _w((lambda *s: torch.randn(*s, dtype=torch.bfloat16) * 0.8)(B, Sk, Dc)),
            "w_q": _w((lambda *s: torch.randn(*s, dtype=torch.bfloat16) * 3.2)(M, H, D) * (M ** -0.5)),
            "w_uk": _w((lambda *s: torch.randn(*s, dtype=torch.bfloat16) * 3.2)(Dc, H, D) * (Dc ** -0.5)),
            "w_uv": _w((lambda *s: torch.randn(*s, dtype=torch.bfloat16) * 0.8)(Dc, H, D) * (Dc ** -0.5)),
            "w_o": _w((lambda *s: torch.randn(*s, dtype=torch.bfloat16) * 0.8)(H, D, M) * ((H * D) ** -0.5)),
        }
    _A_in = _A_setup()

    def _B_setup():
        B, S, D, F = 2, 1, 512, 1376
        return {
            "x": _w((lambda *s: torch.randn(*s, dtype=torch.bfloat16) * 0.05)(B, S, D)),
            "w1": _w((lambda *s: torch.randn(*s, dtype=torch.bfloat16) * 3.2)(D, F) * (D ** -0.5)),
            "w2": _w((lambda *s: torch.randn(*s, dtype=torch.bfloat16) * 0.2)(F, D) * (F ** -0.5)),
        }
    _B_in = _B_setup()

    return {
        "A_x": _A_in["x"],
        "A_c_kv": _A_in["c_kv"],
        "A_w_q": _A_in["w_q"],
        "A_w_uk": _A_in["w_uk"],
        "A_w_uv": _A_in["w_uv"],
        "A_w_o": _A_in["w_o"],
        "B_x": _B_in["x"],
        "B_w1": _B_in["w1"],
        "B_w2": _B_in["w2"],
    }

def reference(A_x, A_c_kv, A_w_q, A_w_uk, A_w_uv, A_w_o, B_x, B_w1, B_w2):
    def _A_ref(x, c_kv, w_q, w_uk, w_uv, w_o):
        B, Sq, M = x.shape[0], x.shape[1], x.shape[2]
        Sk = c_kv.shape[1]
        H, D = w_q.shape[1], w_q.shape[2]
        q = torch.einsum("bqm,mhd->bhqd", x, w_q)
        k = torch.einsum("bkc,chd->bhkd", c_kv, w_uk)
        v = torch.einsum("bkc,chd->bhkd", c_kv, w_uv)
        scores = torch.einsum("bhqd,bhkd->bhqk", q, k) * (D ** -0.5)
        off = Sk - Sq
        qi = torch.arange(Sq)[:, None]
        kj = torch.arange(Sk)[None, :]
        cmask = kj <= (qi + off)
        scores = torch.where(cmask[None, None], scores, -1e9)
        p = _softmax(scores, axis=-1)
        ctx = torch.einsum("bhqk,bhkd->bhqd", p, v)
        return torch.einsum("bhqd,hdm->bqm", ctx, w_o)

    def _B_ref(x, w1, w2):
        h = torch.einsum("bsd,df->bsf", x, w1)
        h = _silu(h)
        out = torch.einsum("bsf,fd->bsd", h, w2)
        return out

    x = A_x
    xn = _layernorm(x, axis=-1)
    return x + _A_ref(xn, A_c_kv, A_w_q, A_w_uk, A_w_uv, A_w_o) + _B_ref(xn, B_w1, B_w2)
```

```python
import sys
NAME = "parallel_sum__compressed_kv_cla__dense_activation_silu__decode"
KN = NAME + "_kernel"

P = dict(
    stamps=0,
    a_delay=0,
    a_win=63,
    a_nwin=0,
    red_sleep=10,
    localrounds=16,
    x_exit=0, x_s2=0, x_wc=0, x_half=0,
    a_fpos=12,
    a_win2=5,
    w_win=63,
    p3w_early=0,
    w_pf=2,
    h0_k=2,
    s2_gate=0,
    h0_sleep=0,
    a_lag=4,
    nt=0,
    nt_ckv=0,
    x_dbg=0, x_amp=0, x_endsleep=0, x_startsleep=0,
    st_sleep=0,
    pf_nt=0,
    xmap=0,
    lr2=32,
    out_lds=1,
    a_qk=1,
    w_ckv=1,
    w_ckv_ord=3,
    a_pf=2,
    qk_stag=0,
    smask=0xffff,
    tr_pre=8,
    out_sc1=0, x_noloc=0,
    w_slow=1,
    inl=0, pvt=1,
    a_nat=1, w_nat=1,
    h2w=1,
    w2_delay=0,
)
for a in sys.argv[2:]:
    k, v = a.split("=")
    assert k in P, k
    P[k] = int(v, 0)

EPOCH = 0x0
FLG = 0x4000
CKF = 0x2000
QPA, QPB = 0x10000, 0x30000
QA = 0x50000
ST = 0x340000
HPA, HPB = 0xC0000, 0x300000
CPA, CPB = 0x70000, 0x90000
OUTP = 0xB0000
OP = 0x100000
TS = 0x400000
WS_BYTES = 0x10000000
R0 = 0
XN = 32768; XNS = 1088
QL = XN + 2304; QLS = 320
QST = XN + 2944
WT = XN + 5248; WTS = 192
FLAGL = XN + 5632
CKT = XN + 5760
R1, W1L, OIN = 38912, 83968, 100352
A_QL, A_PL, A_MX, A_SM = 131072, 147456, 151552, 152064
A_CK = 81920
A_OT = 65536
A_WO, A_W2, KB = 0, 32768, 45056
KBS = 832
LDS_BYTES = 154880
TMO = 1 << 18

out = []
def e(s): out.append("  " + s)
def lab(s): out.append(s + ":")
def c(s): out.append("  ; " + s)

sX, sR, sW, sH, sJ = "s3", "s4", "s5", "s6", "s7"
SX, SWS, SA, SB, SC, SD, SE, SF, SO = (f"s[{i}:{i+3}]" for i in (8, 12, 16, 20, 24, 28, 32, 36, 40))
sTAG = "s44"
sPK0, sPK1, sPK2, sUP = "s50", "s51", "s52", "s53"
sM2 = "s[54:55]"
sCNT = "s56"
def stamp(k):
    if P["stamps"] and (P["smask"] >> k) & 1:
        e(f"s_{'memtime' if P['stamps'] == 4 else 'memrealtime'} s[{64+2*k}:{65+2*k}]")
def dump_stamps():
    if not P["stamps"]: return
    e("s_mov_b64 exec, -1")
    e("s_waitcnt lgkmcnt(0)")
    if P["stamps"] == 2:
        e("s_getreg_b32 s94, hwreg(HW_REG_HW_ID)")
    for k in range(16):
        e(f"v_writelane_b32 v250, s{64+2*k}, {k}")
    e("s_lshl_b32 s45, s2, 9")
    e(f"s_lshl_b32 s46, {sW}, 6")
    e("s_add_u32 s45, s45, s46")
    e(f"s_add_u32 s45, s45, {TS}")
    e("v_lshlrev_b32 v251, 2, v1")
    e("s_mov_b64 exec, 0xffff")
    e(f"buffer_store_dword v250, v251, {SWS}, s45 offen")

def srd(idx, nbytes):
    e(f"s_mov_b32 s{idx+2}, {nbytes}")
    e(f"s_mov_b32 s{idx+3}, 0x00020000")
def pack_granule(g, a):
    e(f"v_perm_b32 v{g}, v{a}, v{a+3}, {sPK0}")
    e(f"v_perm_b32 v{g+1}, v{a+1}, v{a+3}, {sPK1}")
    e(f"v_perm_b32 v{g+2}, v{a+2}, v{a+3}, {sPK2}")
    e(f"v_mov_b32 v{g+3}, {sTAG}")
def unpack_granule(g):
    e(f"v_perm_b32 v{g+3}, v{g+1}, v{g}, {sUP}")
    e(f"v_lshl_or_b32 v{g+3}, v{g+2}, 24, v{g+3}")
def halving_reduce(g):
    e("s_nop 1")
    e(f"v_permlane32_swap_b32 v{g}, v{g+2}")
    e(f"v_permlane32_swap_b32 v{g+1}, v{g+3}")
    e("s_nop 0")
    e(f"v_add_f32 v{g}, v{g}, v{g+2}")
    e(f"v_add_f32 v{g+1}, v{g+1}, v{g+3}")
    e("s_nop 1")
    e(f"v_permlane16_swap_b32 v{g}, v{g+1}")
    e("s_nop 0")
    e(f"v_add_f32 v{g}, v{g}, v{g+1}")
def dual_poll(name, dst, voff, sA, sB, first_extra=None, after_first="vmcnt(0)", lr=None):
    lr = P["localrounds"] if lr is None else lr
    if lr == 0: sA = sB
    e(f"s_mov_b32 {sCNT}, 0")
    e(f"buffer_load_dwordx4 v[{dst}:{dst+3}], v{voff}, {SWS}, {sA} offen sc1")
    if first_extra: first_extra()
    e(f"s_waitcnt {after_first}")
    lab(f"L_{name}_chk")
    e(f"v_cmp_ne_u32 vcc, {sTAG}, v{dst+3}")
    e(f"s_cbranch_vccz L_{name}_ok")
    e(f"s_add_u32 {sCNT}, {sCNT}, 1")
    e(f"s_cmp_gt_u32 {sCNT}, {TMO}")
    e(f"s_cbranch_scc1 L_{name}_ok")
    if sA != sB:
        e(f"s_cmp_gt_u32 {sCNT}, {lr}")
        e(f"s_cselect_b32 s45, {sCNT}, 0")
        e("s_and_b32 s45, s45, 3")
        e("s_cmp_eq_u32 s45, 3")
        e(f"s_cselect_b32 s45, {sB}, {sA}")
    else:
        e(f"s_mov_b32 s45, {sA}")
    e(f"buffer_load_dwordx4 v[{dst}:{dst+3}], v{voff}, {SWS}, s45 offen sc1")
    e("s_waitcnt vmcnt(0)")
    e(f"s_branch L_{name}_chk")
    lab(f"L_{name}_ok")
def dual_poll4(name, dst, voffs, sA, sB, valid=None, lr=None, offs=(0, 0, 0, 0)):
    lr = P["localrounds"] if lr is None else lr
    if lr == 0: sA = sB
    e(f"s_mov_b32 {sCNT}, 0")
    e(f"s_mov_b32 s45, {sA}")
    lab(f"L_{name}_ld")
    for i in range(4):
        e(f"buffer_load_dwordx4 v[{dst+4*i}:{dst+4*i+3}], v{voffs[i]}, {SWS}, s45 offen offset:{offs[i]} sc1")
    e(f"s_add_u32 {sCNT}, {sCNT}, 1")
    if sA != sB:
        e(f"s_cmp_gt_u32 {sCNT}, {lr}")
        e(f"s_cselect_b32 s45, {sCNT}, 0")
        e("s_and_b32 s45, s45, 3")
        e("s_cmp_eq_u32 s45, 3")
        e(f"s_cselect_b32 s45, {sB}, {sA}")
    else:
        e(f"s_mov_b32 s45, {sA}")
    e("s_waitcnt vmcnt(0)")
    t = dst + 16
    for i in range(4):
        e(f"v_xor_b32 v{t+i}, {sTAG}, v{dst+4*i+3}")
    e(f"v_or3_b32 v{t}, v{t}, v{t+1}, v{t+2}")
    e(f"v_or_b32 v{t}, v{t}, v{t+3}")
    e(f"v_cmp_ne_u32 vcc, 0, v{t}")
    if valid:
        e(f"s_and_b64 vcc, vcc, {valid}")
        e(f"s_cbranch_scc0 L_{name}_ok")
    else:
        e(f"s_cbranch_vccz L_{name}_ok")
    e(f"s_cmp_lt_u32 {sCNT}, {TMO}")
    e(f"s_cbranch_scc1 L_{name}_ld")
    lab(f"L_{name}_ok")
def sum4(dst):
    for i in range(4):
        unpack_granule(dst + 4*i)
    for k in range(4):
        e(f"v_add_f32 v{dst+k}, v{dst+k}, v{dst+4+k}")
        e(f"v_add_f32 v{dst+8+k}, v{dst+8+k}, v{dst+12+k}")
    for k in range(4):
        e(f"v_add_f32 v{dst+k}, v{dst+k}, v{dst+8+k}")
def sum4_reduce(dst):
    sum4(dst)
    halving_reduce(dst)
def mfma(d, a, b, cc):
    cs = "0" if cc is None else f"v[{cc}:{cc+3}]"
    e(f"v_mfma_f32_16x16x32_bf16 v[{d}:{d+3}], v[{a}:{a+3}], v[{b}:{b+3}], {cs}")
def dma(voff, srd_, soff, flags, off=0, shared=False):
    if flags == "nt" and not P["nt_ckv" if srd_ in (SD, SF) or shared else "nt"]: flags = ""
    o = f" offset:{off}" if off else ""
    e(f"buffer_load_dwordx4 v{voff}, {srd_}, {soff} offen{o} {flags} lds")
def row_allreduce16(op, v):
    for ctl in ("quad_perm:[1,0,3,2]", "quad_perm:[2,3,0,1]", "row_half_mirror", "row_mirror"):
        e("s_nop 1")
        e(f"v_{op}_f32_dpp v{v}, v{v}, v{v} {ctl} row_mask:0xf bank_mask:0xf")
def oct_reduce_u32(vs):
    for ctl in ("quad_perm:[1,0,3,2]", "quad_perm:[2,3,0,1]", "row_half_mirror"):
        e("s_nop 1" if len(vs) == 1 else "s_nop 0")
        for v in vs:
            e(f"v_add_u32_dpp v{v}, v{v}, v{v} {ctl} row_mask:0xf bank_mask:0xf")
def swap_reduce(op, v, t, which):
    e(f"v_mov_b32 v{t}, v{v}")
    e("s_nop 1")
    e(f"v_permlane{which}_swap_b32 v{v}, v{t}")
    e("s_nop 0")
    e(f"v_{op}_f32 v{v}, v{v}, v{t}")
def round_bf16(v):
    e(f"v_cvt_pk_bf16_f32 v{v}, v{v}, v{v}")
    e(f"v_lshlrev_b32 v{v}, 16, v{v}")
def tr(dst, addr, off):
    e(f"ds_read_b64_tr_b16 v[{dst}:{dst+1}], v{addr} offset:{off}")
def rd128(dst, addr, off):
    e(f"ds_read_b128 v[{dst}:{dst+3}], v{addr} offset:{off}")

hdr = open("cdna_kernels/" + NAME + ".s.ref").read().split("; Override launch")[0]
out.append(hdr.rstrip())
out.append(f"; @launch grid=(256,1,1) block=(512,1,1) lds={LDS_BYTES}")
out.append('.amdgcn_target "amdgcn-amd-amdhsa--gfx950"')
out.append(".text")
out.append(f".globl {KN}")
out.append(".p2align 8")
out.append(f".type {KN},@function")
lab(KN)
c("the first 256 bytes hold everything waves 0-3 of a weight CU need to start the w_q stream")
stamp(0)
if P["x_dbg"]: e("s_memrealtime s[64:65]")
for _ in range(P["x_startsleep"]): e("s_sleep 127")
e("s_load_dwordx2 s[16:17], s[0:1], 16")
e("s_load_dwordx2 s[8:9], s[0:1], 0")
e("s_getpc_b64 s[46:47]")
lab("L_pc")
e("v_lshlrev_b32 v5, 7, v0")
e("s_cmpk_ge_u32 s2, 0x100")
e("s_cbranch_scc1 L_end")
e("v_min_u32 v5, L_codeend-L_pc-4, v5")
e("v_lshrrev_b32 v4, 6, v0")
e("global_load_dword v252, v5, s[46:47]")
e(f"v_readfirstlane_b32 {sW}, v4")
e(f"s_lshr_b32 {sR}, s2, 3")
e(f"s_and_b32 {sX}, s2, {3 if P['xmap'] else 7}")
e("v_and_b32 v2, 15, v0")
e("v_bfe_u32 v3, v0, 4, 2")
if P["xmap"]: e("s_bitcmp1_b32 s2, 2")
else: e(f"s_cmp_ge_u32 {sR}, 16")
e("s_cbranch_scc1 L_A")
e(f"s_lshr_b32 s45, {sR}, 2")
e(f"s_lshl{3 if P['xmap'] else 2}_add_u32 {sH}, {sX}, s45")
e(f"s_and_b32 {sJ}, {sR}, 3")
e(f"s_and_b32 s58, {sW}, 3")
e(f"s_lshl2_add_u32 s45, {sJ}, s58")
e("s_lshl_b32 s45, s45, 18")
e(f"s_lshl_b32 s57, {sH}, 8")
e("s_add_u32 s57, s57, s45")
e("s_lshl_b32 s58, s58, 13")
e("v_lshlrev_b32 v4, 1, v3")
e("v_xor_b32 v4, v2, v4")
e("v_lshlrev_b32 v4, 4, v4")
e("v_lshl_add_u32 v10, v3, 13, v4")
if P["x_wc"]:
    e("v_and_b32 v10, 63, v0")
    e("v_lshlrev_b32 v10, 4, v10")
    e(f"s_lshl_b32 s57, {sH}, 2")
    e(f"s_add_u32 s57, s57, {sJ}")
    e("s_lshl_b32 s57, s57, 15")
    e("s_add_u32 s57, s57, s58")
e("v_lshlrev_b32 v5, 25, v0")
e("v_lshrrev_b32 v5, 21, v5")
e("s_lshl_b32 s18, 1, 22")
e("s_lshl_b32 s19, 1, 17")
e("s_mov_b32 m0, s58")
e("s_movk_i32 s48, 0x80")
e(f"s_lshl_b32 s49, 1, {10 if P['x_wc'] else 15}")
e("s_mov_b32 s47, 3")
e(f"s_cmp_gt_u32 {sW}, 3")
e("s_waitcnt lgkmcnt(0)")
e("global_load_dwordx4 v[20:23], v5, s[8:9]")
e("s_cbranch_scc1 L_w_hi")
if P["x_s2"]: e("s_branch L_w_hi")
lab("L_wq")
dma(10, SA, "s57", "nt")
e("s_addk_i32 m0, 0x400")
e("s_add_u32 s57, s57, s49")
dma(10, SA, "s57", "nt")
e("s_addk_i32 m0, 0x400")
e("s_add_u32 s57, s57, s49")
e("v_xor_b32 v10, s48, v10")
e("s_sub_u32 s47, s47, 1")
e("s_cbranch_scc0 L_wq")
e(f"s_sub_u32 s57, s57, {0x2000 if P['x_wc'] else 0x40000}")
lab("L_w_hi")
stamp(1)
c("================= weight CU: head h = 4x + (r>>2), quarter j = r&3 =================")
if P["xmap"]:
    e(f"s_lshr_b32 {sX}, {sH}, 2")
    e(f"s_and_b32 {sR}, {sR}, 15")
e("s_load_dwordx2 s[12:13], s[0:1], 88")
e("s_load_dwordx2 s[20:21], s[0:1], 24")
e("s_load_dwordx2 s[24:25], s[0:1], 32")
e("s_load_dwordx2 s[32:33], s[0:1], 56")
e("s_load_dwordx2 s[28:29], s[0:1], 40")
e("s_load_dwordx2 s[36:37], s[0:1], 64")
if P["w_ckv"]: e("s_load_dwordx2 s[40:41], s[0:1], 8")
srd(12, WS_BYTES); srd(20, 4194304)
e("v_and_b32 v1, 63, v0")
e("v_mov_b32 v7, 0")
e("v_lshlrev_b32 v8, 4, v1")
e("v_xor_b32 v4, v2, v3")
e("v_lshlrev_b32 v4, 4, v4")
e("v_lshl_add_u32 v12, v3, 13, v4")
e("v_xor_b32 v13, 0x40, v12")
e("v_xor_b32 v14, 0x80, v12")
e("v_xor_b32 v15, 0xc0, v12")
e(f"s_lshl_b32 s59, {sX}, 4")
e(f"s_add_u32 s59, s59, {sR}")
e("v_lshlrev_b32 v9, 15, v3")
e("v_lshl_add_u32 v9, v2, 4, v9")
e("s_lshl_b32 s60, s59, 8")
e(f"s_add_u32 s60, s60, {QA}")
e("s_lshl_b32 s62, s59, 10")
e(f"s_add_u32 s45, s62, {QPA}")
e("v_lshlrev_b32 v28, 7, v1")
e("v_mov_b32 v24, -1")
e("v_mov_b32 v25, -1")
e("v_mov_b32 v26, -1")
e("v_mov_b32 v27, -1")
e("s_waitcnt lgkmcnt(0)")
e(f"s_load_dword {sTAG}, s[12:13], 0")
e(f"s_cmp_lg_u32 {sW}, 0")
e("s_cbranch_scc1 L_w_norst")
e("s_mov_b32 exec_hi, 0")
e(f"buffer_store_dwordx4 v[24:27], v9, {SWS}, s60 offen sc1")
e("s_mov_b64 exec, 0xff")
e(f"buffer_load_dword v29, v28, {SWS}, s45 offen sc1")
e("s_mov_b64 exec, -1")
lab("L_w_norst")
e(f"s_cmp_lt_u32 {sW}, 4")
e("s_cbranch_scc1 L_w_lo")
for i in range(0 if P["x_s2"] else 8):
    e(f"s_add_u32 m0, s58, {R1 + i*1024}")
    e(f"s_add_u32 s45, s57, {i*(1024 if P['x_wc'] else 32768)}")
    dma(10 if P["x_wc"] else 12 + (i & 3), SB, "s45", "nt")
lab("L_w_lo")
srd(24, 4194304); srd(32, 1409024); srd(28, 4194304); srd(36, 1409024)
def consts():
    e(f"s_mov_b32 {sPK0}, 0x07060501")
    e(f"s_mov_b32 {sPK1}, 0x07060502")
    e(f"s_mov_b32 {sPK2}, 0x07060503")
    e(f"s_mov_b32 {sUP}, 0x0c04000c")
    e("s_mov_b32 s54, 0x00030003")
    e("s_mov_b32 s55, 0x00030003")
consts()
if P["w_ckv"]:
    srd(40, 8388608)
    e(f"s_lshl_b32 s99, {sX}, 20")
    e(f"s_lshr_b32 s45, {sR}, 1")
    e("s_lshl_b32 s45, s45, 17")
    e("s_add_u32 s99, s99, s45")
    e(f"s_and_b32 s45, {sR}, 1")
    e("s_lshl_b32 s45, s45, 15")
    e("s_add_u32 s99, s99, s45")
    e("s_add_u32 s99, s99, s58")
    e("s_add_u32 s99, s99, 0x10000")
def ckv_pf():
    e(f"buffer_load_dword v29, v28, {SO}, s99 offen {'nt' if P['nt_ckv'] else ''}")
c("LDS / hand-off addresses")
e("v_lshrrev_b32 v4, 2, v2")
e("v_and_b32 v5, 3, v2")
e("v_and_b32 v30, 1, v3")
e("v_lshl_or_b32 v30, v30, 2, v4")
e(f"v_xor_b32 v30, {sW}, v30")
e("v_lshlrev_b32 v30, 5, v30")
e("v_lshl_add_u32 v30, v5, 3, v30")
e("v_lshl_add_u32 v31, v3, 3, v4")
e("v_lshl_add_u32 v16, v31, 8, v30")
e("v_and_b32 v32, 1, v2")
e(f"v_mul_u32_u24 v17, {XNS}, v32")
e(f"s_lshl_b32 s45, {sJ}, 8")
e("v_lshl_add_u32 v18, v3, 4, v17")
e("v_add_u32 v18, s45, v18")
e(f"v_mul_u32_u24 v19, {QLS}, v32")
e("v_lshl_add_u32 v33, v3, 4, v19")
e("v_lshlrev_b32 v34, 5, v3")
e("v_lshl_add_u32 v34, v2, 4, v34")
e("v_lshrrev_b32 v36, 1, v1")
e("v_lshl_add_u32 v37, v36, 3, v19")
e("v_xor_b32 v40, v2, v3")
e("v_lshlrev_b32 v40, 4, v40")
e("v_lshl_add_u32 v40, v2, 8, v40")
e(f"s_lshl_b32 s45, {sW}, 12")
e("v_add_u32 v40, s45, v40")
e("v_xor_b32 v41, 0x40, v40")
e("v_xor_b32 v42, 0x80, v40")
e("v_xor_b32 v43, 0xc0, v40")
e(f"s_lshl_b32 s45, {sW}, 5")
e("v_lshl_add_u32 v39, v3, 3, s45")
e("v_lshl_add_u32 v44, v2, 8, v39")
e("v_add_u32 v45, v19, v39")
e(f"s_lshl_b32 s45, {sW}, 7")
e("s_add_u32 s62, s62, s45")
e(f"s_lshl_b32 s61, {sH}, 12")
e(f"s_add_u32 s63, s61, {QPB}")
e(f"s_add_u32 s61, s61, {QPA}")
e(f"s_add_u32 s48, s62, {QPA}")
e(f"s_add_u32 s49, s62, {QPB}")
e(f"s_cmp_gt_u32 {sW}, 3")
e("s_cbranch_scc1 L_w_lnend")
c("wave 1 clears the weight table and the retry flag")
e(f"s_cmp_lg_u32 {sW}, 1")
e("s_cbranch_scc1 L_w_noinit")
e("v_lshlrev_b32 v46, 2, v1")
e(f"ds_write_b32 v46, v7 offset:{WT}")
e(f"ds_write_b32 v46, v7 offset:{WT+256}")
lab("L_w_noinit")
e(f"s_cmp_lt_u32 {sW}, 2")
e("s_cbranch_scc1 L_w_noln")
e("s_waitcnt vmcnt(8)")
c("layer norm of row w&1 (bf16 rounding after every step, as the reference does)")
for k in range(4):
    e(f"v_lshlrev_b32 v{48+2*k}, 16, v{20+k}")
    e(f"v_and_b32 v{49+2*k}, 0xffff0000, v{20+k}")
e("v_add_f32 v56, v48, v49")
e("v_add_f32 v57, v50, v51")
e("v_add_f32 v58, v52, v53")
e("v_add_f32 v59, v54, v55")
e("v_add_f32 v56, v56, v57")
e("v_add_f32 v58, v58, v59")
e("v_add_f32 v56, v56, v58")
row_allreduce16("add", 56)
swap_reduce("add", 56, 57, 16)
swap_reduce("add", 56, 57, 32)
e("v_mul_f32 v56, 0x3b000000, v56")
for k in range(8):
    e(f"v_sub_f32 v{60+k}, v{48+k}, v56")
e("v_mul_f32 v57, v60, v60")
for k in range(1, 8):
    e(f"v_fmac_f32 v57, v{60+k}, v{60+k}")
row_allreduce16("add", 57)
swap_reduce("add", 57, 58, 16)
swap_reduce("add", 57, 58, 32)
e("v_mul_f32 v57, 0x3b000000, v57")
round_bf16(56)
round_bf16(57)
e("v_add_f32 v57, 0x3727c5ac, v57")
round_bf16(57)
e("v_sqrt_f32 v57, v57")
e("s_nop 0")
round_bf16(57)
e("v_rcp_f32 v57, v57")
for k in range(8):
    e(f"v_sub_f32 v{60+k}, v{48+k}, v56")
for k in range(4):
    e(f"v_cvt_pk_bf16_f32 v{48+k}, v{60+2*k}, v{61+2*k}")
for k in range(4):
    e(f"v_lshlrev_b32 v{60+2*k}, 16, v{48+k}")
    e(f"v_and_b32 v{61+2*k}, 0xffff0000, v{48+k}")
for k in range(8):
    e(f"v_mul_f32 v{60+k}, v{60+k}, v57")
for k in range(4):
    e(f"v_cvt_pk_bf16_f32 v{48+k}, v{60+2*k}, v{61+2*k}")
e(f"s_and_b32 s45, {sW}, 1")
e(f"s_mul_i32 s45, s45, {XNS}")
e("v_add_u32 v56, s45, v8")
e(f"ds_write_b128 v56, v[48:51] offset:{XN}")
lab("L_w_noln")
e(f"s_cmp_eq_u32 {sW}, 0")
e("s_cbranch_scc1 L_w_w0")
e("s_waitcnt vmcnt(0)")
lab("L_w_w0")
e("s_waitcnt vmcnt(2)")
lab("L_w_lnend")
e("s_waitcnt lgkmcnt(0)")
e(f"s_add_u32 {sTAG}, {sTAG}, 1")
stamp(2)
if P["x_s2"]:
    e("s_waitcnt vmcnt(0)")
    e("s_barrier")
    e("s_branch L_w_noqa")
if P["x_exit"] == 1:
    e("s_waitcnt vmcnt(0)")
    stamp(3)
    e("s_branch L_w_fin")
e("s_barrier")
c("P1a: partial q over my m quarter, d tile w")
for s in range(4):
    rd128(56 + 4*s, 18, XN + s*64)
    tr(72 + 4*s, 16, R0 + s*8192)
    tr(74 + 4*s, 16, R0 + s*8192 + 1024)
for s in range(4):
    e(f"s_waitcnt lgkmcnt({9 - 3*s})")
    mfma(88, 72 + 4*s, 56 + 4*s, None if s == 0 else 88)
e("s_nop 7")
pack_granule(92, 88)
e(f"s_mov_b64 exec, {sM2}")
if not P["x_noloc"]: e(f"buffer_store_dwordx4 v[92:95], v34, {SWS}, s48 offen")
e(f"buffer_store_dwordx4 v[92:95], v34, {SWS}, s49 offen sc1")
stamp(3)
e(f"s_cmp_gt_u32 {sW}, 3")
e("s_cbranch_scc1 L_w_h0")
if P["w_ckv"] >= 2:
    e("s_mov_b64 exec, -1")
    if P["w_ckv"] == 3:
        e(f"s_cmp_lt_u32 {sW}, 2")
        e("s_cbranch_scc1 L_w_ck2")
    ckv_pf()
    lab("L_w_ck2")
e(f"s_cmp_lg_u32 {sW}, 0")
e("s_cbranch_scc1 L_w_h0done")
e("s_lshl_b32 s45, s59, 7")
e(f"s_add_u32 s45, s45, {FLG}")
e(f"v_mov_b32 v6, {sTAG}")
e("s_mov_b64 exec, 1")
e(f"s_waitcnt vmcnt({(2 if P['x_noloc'] else 3) + (P['w_ckv'] == 2)})")
e(f"buffer_store_dword v6, v7, {SWS}, s45 offen sc1")
e("s_branch L_w_h0done")
lab("L_w_h0")
e("s_mov_b64 exec, -1")
e(f"s_cmp_eq_u32 {sW}, 7")
e("s_cbranch_scc1 L_w_h0p")
e(f"s_waitcnt vmcnt({1 if P['x_noloc'] else 2})")
e("s_branch L_w_h0done")
lab("L_w_h0p")
e(f"s_waitcnt vmcnt({(1 if P['x_noloc'] else 2) + P['h0_k']})")
dual_poll4("h0", 96, [8, 8, 8, 8], "s61", "s63", offs=(0, 1024, 2048, 3072))
stamp(4)
sum4(96)
e("v_cvt_pk_bf16_f32 v96, v96, v97")
e("v_cvt_pk_bf16_f32 v97, v98, v99")
e(f"ds_write_b64 v37, v[96:97] offset:{QL}")
lab("L_w_h0done")
e("s_mov_b64 exec, -1")
e("s_waitcnt lgkmcnt(0)")
e("s_barrier")
c("P1b: absorbed query for my c quarter, c tile w")
for s in range(4):
    rd128(56 + 4*s, 33, QL + s*64)
    rd128(72 + 4*s, 40 + s, R1)
if P["w_ckv"] in (1, 3):
    e(f"s_cmp_lt_u32 {sW}, 4")
    e("s_cbranch_scc1 L_w_nockv")
    if P["w_ckv"] == 3:
        e(f"s_cmp_gt_u32 {sW}, 5")
        e("s_cbranch_scc1 L_w_nockv")
    ckv_pf()
    lab("L_w_nockv")
for s in range(4):
    e(f"s_waitcnt lgkmcnt({6 - 2*s})")
    mfma(88, 72 + 4*s, 56 + 4*s, None if s == 0 else 88)
e("s_nop 7")
e("v_cvt_pk_bf16_f32 v92, v88, v89")
e("v_cvt_pk_bf16_f32 v93, v90, v91")
e(f"s_mov_b64 exec, {sM2}")
e(f"ds_write_b64 v44, v[92:93] offset:{QST}")
e("s_mov_b64 exec, -1")
e("s_waitcnt lgkmcnt(0)")
e("s_barrier")
e(f"s_cmp_lg_u32 {sW}, 0")
e("s_cbranch_scc1 L_w_noqa")
e("s_mov_b32 exec_hi, 0")
rd128(92, 8, QST)
e("s_waitcnt lgkmcnt(0)")
e(f"buffer_store_dwordx4 v[92:95], v9, {SWS}, s60 offen sc1")
e("s_mov_b64 exec, -1")
lab("L_w_noqa")
stamp(5)
if P["x_exit"] == 2: e("s_branch L_w_fin")
c("second stream: waves 0-3 w_uv, waves 4-7 w1")
def wthr():
    if P["w_win"] < 63: e(f"s_waitcnt vmcnt({P['w_win']})")
def t0x(dst):
    e(f"s_mul_i32 {dst}, {sX}, 11")
    e(f"s_sub_u32 s45, {sX}, 6")
    e("s_max_i32 s45, s45, 0")
    e(f"s_sub_u32 {dst}, {dst}, s45")
e("s_lshl_b32 s98, s59, 11")
e(f"s_add_u32 s98, s98, {HPA}")
if P["s2_gate"]:
    c("pacing only: let the c_kv stream of this group finish first")
    e(f"s_cmp_lg_u32 {sW}, 1")
    e("s_cbranch_scc1 L_w_gate")
    e(f"s_lshl_b32 s45, {sX}, 7")
    e(f"s_add_u32 s45, s45, {CKF}")
    e("v_lshlrev_b32 v46, 2, v2")
    e(f"s_mov_b32 {sCNT}, 0")
    lab("L_w_gl")
    e(f"buffer_load_dword v47, v46, {SWS}, s45 offen sc1")
    e(f"s_add_u32 {sCNT}, {sCNT}, 1")
    e("s_waitcnt vmcnt(0)")
    e(f"v_cmp_ne_u32 vcc, {sTAG}, v47")
    e("s_cbranch_vccz L_w_gate")
    e(f"s_cmp_lt_u32 {sCNT}, {P['s2_gate']}")
    e("s_cbranch_scc1 L_w_gl")
    lab("L_w_gate")
    e("s_barrier")
if P["w_nat"]:
    c("c_kv first: the second weight stream starts when my share of it is in L2")
    e("s_waitcnt vmcnt(0)")
    e("s_barrier")
if P["w2_delay"]: e(f"s_sleep {P['w2_delay']}")
e(f"s_cmp_gt_u32 {sW}, 3")
e("s_cbranch_scc1 L_w_s2hi")
e("v_xor_b32 v11, 0x80, v10")
for i in range(0 if P["x_s2"] & 2 else 8):
    e(f"s_add_u32 m0, s58, {R0 + i*1024}")
    e(f"s_add_u32 s45, s57, {i*32768}")
    dma(10 + ((i >> 1) & 1), SC, "s45", "nt")
    wthr()
e("s_branch L_w_s2done")
lab("L_w_s2hi")
e(f"s_cmp_lg_u32 {sW}, 6")
e("s_cbranch_scc1 L_w_nopre")
e("s_lshl_b32 s45, s59, 10")
e(f"s_add_u32 s45, s45, {CPA}")
e("s_mov_b64 exec, 0xff")
e(f"buffer_load_dword v29, v28, {SWS}, s45 offen sc1")
e("s_mov_b64 exec, 0xfff")
e(f"buffer_load_dword v29, v28, {SWS}, s98 offen sc1")
e("s_mov_b64 exec, -1")
if P["w_slow"]:
    e("v_and_b32 v46, 31, v1")
    e("v_lshlrev_b32 v46, 13, v46")
    e("v_lshrrev_b32 v47, 5, v1")
    e("v_lshl_add_u32 v46, v47, 7, v46")
    e(f"s_lshl_b32 s45, {sR}, 18")
    e(f"s_lshl_b32 s47, {sX}, 10")
    e("s_add_u32 s45, s45, s47")
    e(f"buffer_load_dword v29, v46, {SC}, s45 offen offset:256")
lab("L_w_nopre")
t0x("s46")
e(f"s_mul_i32 s45, {sR}, {32*2752}")
e("s_lshl_b32 s48, s46, 5")
e("s_add_u32 s45, s45, s48")
e("s_lshr_b32 s48, s58, 7")
e("v_add_u32 v46, s48, v1")
e("s_movk_i32 s47, 2400")
e("s_lshr_b32 s48, s58, 3")
for i in range(0 if P["x_s2"] & 4 else 3):
    if i == 2:
        e(f"s_cmp_eq_u32 {sW}, 7")
        e("s_cbranch_scc1 L_w_w1done")
    e("v_mul_u32_u24 v47, 2979, v46")
    e("v_lshrrev_b32 v47, 16, v47")
    e("v_lshlrev_b32 v48, 4, v46")
    e("v_mad_u32_u24 v47, v47, s47, v48")
    e(f"s_add_u32 m0, s48, {W1L + i*4096}")
    e("v_add_u32 v46, 0x100, v46")
    dma(47, SE, "s45", "nt")
    wthr()
lab("L_w_w1done")
def wo_pf(done):
    c("pull a contiguous 1/16 of this XCD group's w_o / w2 rows into L2 (one lane per 128-B line)")
    e(f"s_lshl_b32 s45, {sX}, 19")
    e(f"s_lshl_b32 s48, {sR}, 15")
    e("s_add_u32 s45, s45, s48")
    e("s_add_u32 s45, s45, s58")
    if not P["x_s2"] & 8: e(f"buffer_load_dword v29, v28, {SD}, s45 offen {'nt' if P['pf_nt'] else ''}")
    e(f"s_cmp_gt_u32 {sW}, 5")
    e(f"s_cbranch_scc1 {done}")
    e("s_lshl_b32 s45, s46, 14")
    e(f"s_mul_i32 s48, {sR}, 12288")
    e("s_add_u32 s45, s45, s48")
    e("s_add_u32 s45, s45, s58")
    e(f"s_cmp_eq_u32 {sW}, 5")
    e("s_cselect_b32 exec_hi, 0, -1")
    if not P["x_s2"] & 16: e(f"buffer_load_dword v29, v28, {SF}, s45 offen {'nt' if P['pf_nt'] else ''}")
    e("s_mov_b64 exec, -1")
if P["w_pf"] == 1: wo_pf("L_w_s2done")
lab("L_w_s2done")
e(f"v_add_u32 v53, {OIN}, v16")
e("v_lshrrev_b32 v51, 3, v0")
e("v_and_b32 v50, 7, v0")
e("v_lshlrev_b32 v50, 4, v50")
e("v_lshl_add_u32 v50, v51, 8, v50")
e(f"v_add_u32 v50, {OIN}, v50")
e("v_lshlrev_b32 v51, 2, v51")
e(f"v_mul_u32_u24 v54, {WTS}, v32")
e("v_lshl_add_u32 v54, v3, 4, v54")
e("v_lshlrev_b32 v55, 1, v3")
e("v_xor_b32 v55, v2, v55")
e(f"s_and_b32 s45, {sW}, 1")
e("s_lshl_b32 s45, s45, 3")
e("v_xor_b32 v55, s45, v55")
e("v_lshlrev_b32 v55, 4, v55")
e("v_lshl_add_u32 v55, v3, 8, v55")
e("s_lshl_b32 s101, s59, 14")
e(f"s_lshl_b32 s45, {sW}, 11")
e("s_add_u32 s101, s101, s45")
e(f"s_add_u32 s101, s101, {OP}")
e(f"s_add_u32 s57, s45, {OIN}")
c("FFN first layer: partial sums over my 32 rows of w1, tiles w and w+8")
e("v_lshl_add_u32 v64, v3, 2, v4")
e("v_mul_u32_u24 v64, 352, v64")
e("v_lshl_add_u32 v64, v5, 3, v64")
e(f"s_lshl_b32 s48, {sW}, 5")
e(f"s_add_u32 s48, s48, {W1L}")
e("v_add_u32 v64, s48, v64")
e(f"s_lshl_b32 s48, {sR}, 6")
e("v_lshl_add_u32 v65, v3, 3, v17")
e("v_add_u32 v65, s48, v65")
e(f"s_lshl_b32 s48, {sW}, 7")
e("s_add_u32 s48, s48, s98")
e(f"s_add_u32 s49, s48, {HPB-HPA}")
e("s_waitcnt vmcnt(0)")
stamp(6)
if P["x_s2"] or P["x_exit"] == 3: e("s_branch L_w_fin")
e("s_barrier")
e(f"ds_read_b64 v[56:57], v65 offset:{XN}")
e(f"ds_read_b64 v[58:59], v65 offset:{XN+32}")
tr(72, 64, 0); tr(74, 64, 5632)
tr(76, 64, 256); tr(78, 64, 5632 + 256)
e("s_waitcnt lgkmcnt(2)")
mfma(88, 72, 56, None)
e("s_waitcnt lgkmcnt(0)")
mfma(84, 76, 56, None)
e("s_nop 6")
pack_granule(92, 88)
e(f"s_mov_b64 exec, {sM2}")
if not P["x_noloc"]: e(f"buffer_store_dwordx4 v[92:95], v34, {SWS}, s48 offen")
e(f"buffer_store_dwordx4 v[92:95], v34, {SWS}, s49 offen sc1")
e(f"s_cmp_gt_u32 {sW}, 2")
e("s_cbranch_scc1 L_w_ffn1done")
pack_granule(80, 84)
if not P["x_noloc"]: e(f"buffer_store_dwordx4 v[80:83], v34, {SWS}, s48 offen offset:1024")
e(f"buffer_store_dwordx4 v[80:83], v34, {SWS}, s49 offen offset:1024 sc1")
lab("L_w_ffn1done")
e("s_mov_b64 exec, -1")
if P["w_pf"] == 3:
    e(f"s_cmp_lt_u32 {sW}, 4")
    e("s_cbranch_scc1 L_w_pfdone")
    wo_pf("L_w_pfdone")
    lab("L_w_pfdone")
c("weight fragments into registers")
for s in range(4):
    tr(96 + 4*s, 16, R0 + s*8192)
    tr(98 + 4*s, 16, R0 + s*8192 + 1024)
if P["h2w"]:
    ML = XN + 5760
    e(f"s_lshr_b32 s45, {sH}, 4")
    e("s_lshl_b32 s45, s45, 16")
    e(f"s_and_b32 s46, {sH}, 15")
    e("s_lshl_b32 s46, s46, 4")
    e("s_add_u32 s48, s45, s46")
    e(f"s_lshl_b32 s46, {sJ}, 8")
    e("s_add_u32 s48, s48, s46")
    e(f"s_add_u32 s99, s48, {ST}")
    e("v_lshlrev_b32 v62, 8, v51")
    e("v_lshlrev_b32 v63, 1, v51")
    e("v_mov_b32 v68, 1")
    e("s_mov_b32 s58, 1")
    e("s_mov_b32 m0, s57")
    c("statistics of the 8 key splits (one XCD group) whose rows this wave fetches")
    stamp(7)
    dual_poll("st", 56, 62, "s99", "s99")
    stamp(8)
    dma(55, SWS, "s101", "sc1")
    dma(55, SWS, "s101", "sc1", 1024)
    e(f"ds_write_b64 v63, v[56:57] offset:{ML}")
    e("s_mov_b64 exec, 1")
    e(f"ds_add_rtn_u32 v69, v7, v68 offset:{FLAGL + 4}")
    e("s_mov_b64 exec, -1")
    e("v_lshlrev_b32 v63, 3, v1")
    e(f"ds_read_b64 v[64:65], v63 offset:{ML}")
    e("s_waitcnt lgkmcnt(0)")
    e("v_readfirstlane_b32 s45, v69")
    e("s_nop 1")
    e("s_cmp_lg_u32 s45, 7")
    e("s_cbranch_scc1 L_w_owait")
    c("the wave that is last: split weights exp2(m - M) / L per batch (lanes 0-31 / 32-63)")
    e("v_mov_b32 v60, v64")
    row_allreduce16("max", 60)
    swap_reduce("max", 60, 61, 16)
    e("v_sub_f32 v60, v64, v60")
    e("v_exp_f32 v60, v60")
    e("s_nop 0")
    e("v_mul_f32 v61, v60, v65")
    row_allreduce16("add", 61)
    swap_reduce("add", 61, 63, 16)
    e("v_rcp_f32 v61, v61")
    e("v_lshrrev_b32 v63, 5, v1")
    e(f"v_mul_u32_u24 v63, {WTS}, v63")
    e("v_mul_f32 v60, v60, v61")
    e("v_lshl_add_u32 v63, v1, 1, v63")
    e("v_cvt_pk_bf16_f32 v60, v60, v60")
    e(f"ds_write_b16 v63, v60 offset:{WT}")
    e("s_branch L_w_owait")
    lab("L_w_oretry")
    e("s_add_u32 s58, s58, 1")
    dma(55, SWS, "s101", "sc1")
    dma(55, SWS, "s101", "sc1", 1024)
    lab("L_w_owait")
    e("s_waitcnt vmcnt(0) lgkmcnt(0)")
    stamp(9)
    e("s_barrier")
    c("combine the 2x32 key splits for c tile w; check my rows against their checksums")
    for kk in range(2):
        rd128(60 + 4*kk, 54, WT + kk*64)
        tr(72 + 4*kk, 53, kk*8192)
        tr(74 + 4*kk, 53, kk*8192 + 1024)
    rd128(80, 50, 0)
    rd128(84, 50, 128)
    e("s_waitcnt lgkmcnt(5)")
    mfma(88, 72, 60, None)
    e("s_waitcnt lgkmcnt(2)")
    mfma(88, 76, 64, 88)
    e("v_mov_b32 v68, s58")
    e("s_waitcnt lgkmcnt(0)")
    e("v_add3_u32 v80, v80, v81, v82")
    e("v_add3_u32 v84, v84, v85, v86")
    e("v_add3_u32 v80, v80, v83, v87")
    e("v_add_u32 v80, v80, v84")
    e("s_nop 1")
    e("v_add_u32_dpp v80, v80, v80 quad_perm:[1,0,3,2] row_mask:0xf bank_mask:0xf")
    e("v_cvt_pk_bf16_f32 v92, v88, v89")
    e("v_cvt_pk_bf16_f32 v93, v90, v91")
    e("v_add_u32_dpp v80, v80, v80 quad_perm:[2,3,0,1] row_mask:0xf bank_mask:0xf")
    e(f"s_mov_b64 exec, {sM2}")
    e(f"ds_write_b64 v45, v[92:93] offset:{QL}")
    e("s_mov_b64 exec, -1")
    e("v_add_u32_dpp v80, v80, v80 row_half_mirror row_mask:0xf bank_mask:0xf")
    e("s_nop 0")
    e("v_cmp_ne_u32 vcc, v80, v58")
    e("s_and_b64 exec, exec, vcc")
    e("s_cbranch_execz L_w_onan")
    e(f"ds_max_u32 v7, v68 offset:{FLAGL}")
else:
    e(f"s_cmp_lg_u32 {sW}, 7")
    e("s_cbranch_scc1 L_w_nopoll")
    c("wave 7: wait for the 64 softmax statistics of my head")
    e(f"s_lshr_b32 s45, {sH}, 4")
    e("s_lshl_b32 s45, s45, 16")
    e(f"s_and_b32 s46, {sH}, 15")
    e("s_lshl_b32 s46, s46, 4")
    e("s_add_u32 s48, s45, s46")
    e(f"s_lshl_b32 s46, {sJ}, 8")
    e("s_add_u32 s48, s48, s46")
    e(f"s_add_u32 s48, s48, {ST}")
    e("v_lshlrev_b32 v62, 10, v1")
    stamp(7)
    dual_poll("st", 56, 62, "s48", "s48")
    stamp(8)
    def split_weights():
        c("split weights: exp2(m - M) / L per batch (lanes 0-31 / 32-63)")
        e("v_mov_b32 v60, v56")
        row_allreduce16("max", 60)
        swap_reduce("max", 60, 61, 16)
        e("v_sub_f32 v60, v56, v60")
        e("v_exp_f32 v60, v60")
        e("s_nop 0")
        e("v_mul_f32 v61, v60, v57")
        row_allreduce16("add", 61)
        swap_reduce("add", 61, 63, 16)
        e("v_rcp_f32 v61, v61")
        e("v_lshrrev_b32 v63, 5, v1")
        e(f"v_mul_u32_u24 v63, {WTS}, v63")
        e("v_mul_f32 v60, v60, v61")
        e("v_lshl_add_u32 v63, v1, 1, v63")
        e("v_cvt_pk_bf16_f32 v60, v60, v60")
        e(f"ds_write_b16 v63, v60 offset:{WT}")
    lab("L_w_nopoll")
    e("s_mov_b32 s58, 0")
    e("s_waitcnt lgkmcnt(0)")
    e("s_barrier")
    lab("L_w_oretry")
    e("s_add_u32 s58, s58, 1")
    e("s_mov_b32 m0, s57")
    e("s_nop 0")
    dma(55, SWS, "s101", "sc1")
    dma(55, SWS, "s101", "sc1", 1024)
    e("s_cmp_gt_u32 s58, 1")
    e("s_cbranch_scc1 L_w_owait")
    e(f"s_cmp_lg_u32 {sW}, 7")
    e("s_cbranch_scc1 L_w_owait")
    e("v_lshlrev_b32 v63, 2, v1")
    e(f"ds_write_b32 v63, v58 offset:{CKT}")
    split_weights()
    lab("L_w_owait")
    e("s_waitcnt vmcnt(0) lgkmcnt(0)")
    stamp(9)
    e("s_barrier")
    c("combine the 2x32 key splits for c tile w; check the rows against their checksums")
    for kk in range(2):
        rd128(60 + 4*kk, 54, WT + kk*64)
        tr(72 + 4*kk, 53, kk*8192)
        tr(74 + 4*kk, 53, kk*8192 + 1024)
    rd128(80, 50, 0)
    rd128(84, 50, 128)
    e(f"ds_read_b32 v69, v51 offset:{CKT}")
    e("s_waitcnt lgkmcnt(6)")
    mfma(88, 72, 60, None)
    e("s_waitcnt lgkmcnt(3)")
    mfma(88, 76, 64, 88)
    e("v_mov_b32 v68, s58")
    e("s_waitcnt lgkmcnt(1)")
    e("v_add3_u32 v80, v80, v81, v82")
    e("v_add3_u32 v84, v84, v85, v86")
    e("v_add3_u32 v80, v80, v83, v87")
    e("v_add_u32 v80, v80, v84")
    e("s_nop 1")
    e("v_add_u32_dpp v80, v80, v80 quad_perm:[1,0,3,2] row_mask:0xf bank_mask:0xf")
    e("v_cvt_pk_bf16_f32 v92, v88, v89")
    e("v_cvt_pk_bf16_f32 v93, v90, v91")
    e("v_add_u32_dpp v80, v80, v80 quad_perm:[2,3,0,1] row_mask:0xf bank_mask:0xf")
    e(f"s_mov_b64 exec, {sM2}")
    e(f"ds_write_b64 v45, v[92:93] offset:{QL}")
    e("s_mov_b64 exec, -1")
    e("v_add_u32_dpp v80, v80, v80 row_half_mirror row_mask:0xf bank_mask:0xf")
    e("s_waitcnt lgkmcnt(1)")
    e("v_cmp_ne_u32 vcc, v80, v69")
    e("s_and_b64 exec, exec, vcc")
    e("s_cbranch_execz L_w_onan")
    e(f"ds_max_u32 v7, v68 offset:{FLAGL}")
lab("L_w_onan")
e("s_mov_b64 exec, -1")
e("s_waitcnt lgkmcnt(0)")
e("s_barrier")
e(f"ds_read_b32 v68, v7 offset:{FLAGL}")
for s in range(4):
    rd128(72 + 4*s, 33, QL + s*64)
e(f"s_add_u32 s48, s62, {CPA}")
e(f"s_add_u32 s49, s62, {CPB}")
e("s_waitcnt lgkmcnt(3)")
mfma(88, 96, 72, None)
e("v_readfirstlane_b32 s45, v68")
for s in range(1, 4):
    e(f"s_waitcnt lgkmcnt({3 - s})")
    mfma(88, 96 + 4*s, 72 + 4*s, 88)
e("s_cmp_lg_u32 s45, s58")
e("s_cbranch_scc1 L_w_ook")
e(f"s_cmp_lt_u32 s58, {TMO >> 2}")
e("s_cbranch_scc1 L_w_oretry")
lab("L_w_ook")
e("s_nop 5")
pack_granule(92, 88)
e(f"s_mov_b64 exec, {sM2}")
if not P["x_noloc"]: e(f"buffer_store_dwordx4 v[92:95], v34, {SWS}, s48 offen")
e(f"buffer_store_dwordx4 v[92:95], v34, {SWS}, s49 offen sc1")
stamp(10)
if P["stamps"]: e("s_mov_b32 s86, s58")
lab("L_w_fin")
stamp(14)
dump_stamps()
e("s_endpgm")

lab("L_A")
c("================= attention CU: 16 heads x 128 keys =================")
if P["xmap"]:
    e(f"s_lshr_b32 s45, {sR}, 4")
    e(f"s_lshl1_add_u32 {sX}, {sX}, s45")
    e(f"s_or_b32 {sR}, {sR}, 16")
if P["a_pf"]:
    e("s_load_dwordx2 s[20:21], s[0:1], 24")
    e("s_lshl_b32 s18, 1, 22")
    e("s_lshl_b32 s19, 1, 17")
    srd(20, 4194304)
    e(f"s_and_b32 s45, {sR}, 15")
    e("s_lshl_b32 s45, s45, 18")
    e(f"s_lshl_b32 s46, {sX}, 10")
    e("s_add_u32 s45, s45, s46")
    e("v_and_b32 v4, 31, v0")
    e("v_lshlrev_b32 v4, 13, v4")
    e("v_bfe_u32 v5, v0, 5, 1")
    if P["a_pf"] == 1:
        e("v_lshl_add_u32 v4, v5, 9, v4")
        e("s_add_u32 s45, s45, 384")
    else:
        e("v_lshl_add_u32 v4, v5, 7, v4")
        e("s_add_u32 s45, s45, 256")
e("s_waitcnt lgkmcnt(0)")
if P["a_pf"]:
    e(f"s_cmp_gt_u32 {sW}, 1")
    e("s_cbranch_scc1 L_a_nopf")
    e(f"s_cmp_eq_u32 {sW}, 1")
    e("s_cbranch_scc1 L_a_pf1")
    e(f"buffer_load_dword v253, v4, {SA}, s45 offen")
    e("s_branch L_a_nopf")
    lab("L_a_pf1")
    e(f"buffer_load_dword v253, v4, {SB}, s45 offen")
    lab("L_a_nopf")
e("s_load_dwordx2 s[16:17], s[0:1], 8")
e("s_load_dwordx2 s[12:13], s[0:1], 88")
e("s_load_dwordx2 s[28:29], s[0:1], 40")
e("s_load_dwordx2 s[36:37], s[0:1], 64")
e("s_load_dwordx2 s[40:41], s[0:1], 72")
srd(16, 8388608); srd(12, WS_BYTES)
e("v_and_b32 v1, 63, v0")
e("v_mov_b32 v7, 0")
e("v_lshlrev_b32 v8, 4, v1")
e(f"s_sub_u32 s45, {sR}, 16")
e("s_and_b32 s57, s45, 1")
e("s_lshr_b32 s45, s45, 1")
e(f"s_lshl_b32 s58, {sX}, 3")
e("s_add_u32 s58, s58, s45")
e(f"s_lshl_b32 s45, {sW}, 1")
e("v_xor_b32 v10, s45, v1")
e("v_lshlrev_b32 v10, 4, v10")
e("s_xor_b32 s45, s45, 9")
e("v_xor_b32 v11, s45, v1")
e("v_lshlrev_b32 v11, 4, v11")
e("s_lshl_b32 s59, s58, 17")
e("s_lshl_b32 s45, s57, 6")
e(f"s_add_u32 s60, s45, {sW}")
e("s_lshl_b32 s60, s60, 10")
e("s_lshl_b32 s61, s57, 20")
e("s_lshl_b32 s45, s58, 8")
e("s_add_u32 s61, s61, s45")
e(f"s_add_u32 s61, s61, {OP}")
e("s_waitcnt lgkmcnt(0)")
stamp(1)
if P["x_s2"]: e("s_branch L_a_fin")
e(f"s_load_dword {sTAG}, s[12:13], 0")
e("v_and_b32 v238, 7, v1")
e("v_lshlrev_b32 v238, 7, v238")
e("s_lshl_b32 s62, s57, 13")
e(f"s_lshl_b32 s45, {sW}, 10")
e("s_add_u32 s62, s62, s45")
e(f"s_add_u32 s62, s62, {FLG}")
def a_loop():
    if P["a_delay"]: e(f"s_sleep {P['a_delay']}")
    lag = P["a_lag"]
    order = [("o", k) for k in range(lag)]
    for k in range(8 - lag): order += [("o", lag + k), ("p", k)]
    order += [("p", k) for k in range(8 - lag, 8)]
    e("s_xor_b32 s46, s60, 0x10000")
    if P["w_ckv"]:
        e("s_lshl_b32 s60, s57, 15")
        e(f"s_lshl_b32 s45, {sW}, 10")
        e("s_add_u32 s60, s60, s45")
        e("s_xor_b32 s46, s60, 0x8000")
        q = lambda who, hi: [(who, hi*8 + k) for k in range(4)]
        if P["w_ckv_ord"] == 0: order = q("o", 0) + q("p", 0) + q("o", 1) + q("p", 1)
        elif P["w_ckv_ord"] == 2: order = q("o", 0) + q("o", 1) + q("p", 0) + q("p", 1)
        elif P["w_ckv_ord"] == 3: order = q("o", 0) + [x for pr in zip(q("o", 1), q("p", 0)) for x in pr] + q("p", 1)
        else: order = q("o", 0) + q("o", 1)[:2] + [x for pr in zip(q("p", 0)[:2], q("o", 1)[2:]) for x in pr] + q("p", 0)[2:] + q("p", 1)
    if P["x_half"]: order = [x for x in order if x[0] == "o"] + [("o", 0)] * 8
    for i, (who, k) in enumerate(order):
        if P["x_half"] and i >= 8 and i != P["a_fpos"]: continue
        if i == P["a_fpos"]:
            e(f"buffer_load_dword v239, v238, {SWS}, s62 offen sc1")
        base = "s60" if who == "o" else "s46"
        e(f"s_add_u32 m0, {base}, {k*8192}")
        e(f"s_add_u32 s45, s59, m0")
        dma(10 + (k & 1), SA, "s45", "nt", shared=True)
        if i < P["a_nwin"] and i >= P["a_win"]:
            e(f"s_waitcnt vmcnt({P['a_win']})")
        elif i >= P["a_nwin"] and P["a_win2"] < 63:
            e(f"s_waitcnt vmcnt({P['a_win2']})")
def a_addr():
    c("addresses")
    e("v_lshrrev_b32 v4, 3, v2")
    e("v_and_b32 v5, 7, v2")
    e("v_lshlrev_b32 v12, 2, v4")
    e("v_xor_b32 v5, v5, v12")
    e("v_lshl_or_b32 v5, v5, 1, v4")
    e("v_xor_b32 v5, v5, v3")
    e("v_lshlrev_b32 v5, 4, v5")
    e("v_lshl_add_u32 v5, v2, 10, v5")
    e(f"s_lshl_b32 s45, {sW}, 14")
    e("v_add_u32 v12, s45, v5")
    e("v_xor_b32 v13, 0x40, v12")
    e("v_xor_b32 v14, 0x80, v12")
    e("v_xor_b32 v15, 0xc0, v12")
    e(f"v_add_u32 v20, {A_QL}, v5")
    e("v_xor_b32 v21, 0x40, v20")
    e("v_xor_b32 v22, 0x80, v20")
    e("v_xor_b32 v23, 0xc0, v20")
    e("v_lshrrev_b32 v4, 2, v2")
    e("v_lshl_add_u32 v4, v3, 2, v4")
    e("v_lshrrev_b32 v5, 3, v4")
    e("v_and_b32 v16, 7, v4")
    e("v_lshlrev_b32 v17, 2, v5")
    e("v_xor_b32 v16, v16, v17")
    e("v_lshl_or_b32 v16, v16, 1, v5")
    e("v_bfe_u32 v5, v2, 1, 1")
    e("v_xor_b32 v16, v16, v5")
    e(f"s_and_b32 s45, {sW}, 1")
    e("s_lshl_b32 s45, s45, 3")
    e("v_xor_b32 v16, s45, v16")
    e("v_lshlrev_b32 v16, 4, v16")
    e("v_and_b32 v5, 1, v2")
    e("v_lshl_add_u32 v16, v5, 3, v16")
    e("v_lshl_add_u32 v16, v4, 10, v16")
    e(f"s_lshr_b32 s45, {sW}, 1")
    e("s_lshl_b32 s45, s45, 8")
    e("v_add_u32 v16, s45, v16")
    e("v_xor_b32 v17, 0x20, v16")
    e("v_xor_b32 v18, 0x40, v16")
    e("v_xor_b32 v19, 0x60, v16")
    for tp in range(4):
        e(f"v_add_u32 v{24+tp}, 0x10000, v{16+tp}")
    c("Q write addresses: heads 2w, 2w+1")
    e(f"s_lshl_b32 s45, {sW}, 2")
    e("s_and_b32 s46, s45, 15")
    e(f"s_cmp_gt_u32 {sW}, 3")
    e("s_cselect_b32 s47, 9, 0")
    e("s_xor_b32 s46, s46, s47")
    e("v_xor_b32 v28, s46, v1")
    e("v_lshlrev_b32 v28, 4, v28")
    e(f"s_lshl_b32 s45, {sW}, 11")
    e(f"s_add_u32 s45, s45, {A_QL}")
    e("v_add_u32 v28, s45, v28")
    e("v_xor_b32 v29, 0x20, v28")
    e("v_lshlrev_b32 v30, 2, v2")
    e(f"v_add_u32 v30, {A_MX}, v30")
    e("v_mov_b32 v4, 0xff800000")
    e("ds_write_b32 v30, v4")
    e("v_lshlrev_b32 v242, 2, v1")
    e(f"v_add_u32 v242, {A_SM}, v242")
    e(f"s_lshl_b32 s45, {sW}, 8")
    e("v_add_u32 v254, s45, v242")
    e(f"s_lshr_b32 s45, {sW}, 1")
    e("s_lshl_b32 s45, s45, 10")
    e(f"s_and_b32 s46, {sW}, 1")
    e("s_lshl_b32 s46, s46, 3")
    e("s_add_u32 s45, s45, s46")
    e(f"s_add_u32 s45, s45, {A_PL}")
    e("v_add_u32 v31, s45, v8")
    e(f"v_add_u32 v236, {A_PL}, v8")
    c("O tile t, lane (n, g): 8 bytes at chunk 2t + (g>>1), half g&1 of the 128-B line of head n")
    e("v_lshrrev_b32 v246, 1, v3")
    e("v_and_b32 v4, 7, v2")
    e("v_xor_b32 v246, v246, v4")
    e("v_lshlrev_b32 v246, 4, v246")
    e("v_and_b32 v4, 1, v3")
    e("v_lshl_add_u32 v246, v4, 3, v246")
    e("v_lshl_add_u32 v246, v2, 7, v246")
    e(f"s_lshl_b32 s45, {sW}, 11")
    e(f"s_add_u32 s45, s45, {A_OT}")
    e("v_add_u32 v246, s45, v246")
    e("v_xor_b32 v247, 0x20, v246")
    e("v_xor_b32 v240, 0x40, v246")
    e("v_xor_b32 v241, 0x60, v246")
    e("v_lshrrev_b32 v4, 3, v1")
    e("v_and_b32 v5, 7, v1")
    e("v_xor_b32 v248, v4, v5")
    e("v_lshlrev_b32 v248, 4, v248")
    e("v_lshl_add_u32 v248, v4, 7, v248")
    e("v_add_u32 v248, s45, v248")
    e("v_lshlrev_b32 v237, 16, v4")
    e("v_lshl_add_u32 v237, v5, 4, v237")
    e(f"s_lshl_b32 s45, {sW}, 8")
    e(f"s_add_u32 s45, s45, {A_CK}")
    e("v_lshl_add_u32 v249, v1, 2, s45")
    e("v_lshlrev_b32 v9, 9, v3")
    e("v_lshl_add_u32 v9, v2, 2, v9")
    e(f"v_add_u32 v9, {A_CK}, v9")
    e(f"s_lshr_b32 s45, {sW}, 1")
    e("s_lshl_b32 s45, s45, 14")
    e("s_add_u32 s61, s61, s45")
    e(f"s_and_b32 s45, {sW}, 1")
    e("s_lshl_b32 s45, s45, 7")
    e("s_add_u32 s61, s61, s45")
    e(f"s_lshr_b32 s45, {sX}, 2")
    e("s_lshl_b32 s63, s45, 15")
    e("s_lshl_b32 s45, s57, 14")
    e("s_add_u32 s63, s63, s45")
    e(f"s_lshl_b32 s45, {sW}, 11")
    e("s_add_u32 s63, s63, s45")
    e(f"s_add_u32 s63, s63, {QA}")
    e("s_lshl_b32 s96, s57, 6")
    e("s_add_u32 s96, s96, s58")
    e("s_lshl_b32 s96, s96, 10")
    e(f"s_add_u32 s96, s96, {ST}")
    e("s_mov_b32 s97, 0x3e0293ee")
    srd(8, 2048); srd(28, 4194304); srd(36, 1409024); srd(40, 2048)
    consts()
    c("output-projection role: column slice ms = (r-16)>>1, head pair hf = r&1")
    e(f"s_and_b32 s99, {sR}, 15")
    e("s_lshr_b32 s98, s99, 1")
    e("s_lshl_b32 s99, s98, 7")
    e("v_and_b32 v243, 7, v1")
    e("v_and_b32 v244, 1, v3")
    e("v_lshlrev_b32 v244, 1, v244")
    e("v_xor_b32 v243, v243, v244")
    e("v_lshlrev_b32 v243, 4, v243")
    e("v_lshrrev_b32 v244, 3, v1")
    e("v_lshl_add_u32 v243, v244, 10, v243")
    e("v_xor_b32 v244, 64, v243")
    e(f"s_and_b32 s45, {sW}, 1")
    e("s_lshl_b32 s45, s45, 6")
    e("v_xor_b32 v245, s45, v243")
    t0x("s100")
    e("s_lshl_b32 s100, s100, 4")
    e("s_mul_i32 s45, s57, 96")
    e("s_add_u32 s100, s100, s45")
    e(f"s_lshl_b32 s45, {sW}, 3")
    e("s_add_u32 s100, s100, s45")
    e("s_lshl_b32 s100, s100, 10")
    e("s_add_u32 s100, s100, s99")
    e(f"s_lshl_b32 s101, {sX}, 19")
    e("s_lshl_b32 s45, s57, 18")
    e("s_add_u32 s101, s101, s45")
    e(f"s_lshl_b32 s45, {sW}, 15")
    e("s_add_u32 s101, s101, s45")
    e("s_add_u32 s101, s101, s99")
    if P["w_pf"] == 2:
        c("waves 0-3 / 4-5 pull a contiguous 1/16 of this group's w_o / w2 rows into L2 once Q is in; waves 6-7 touch nothing")
        e("v_lshlrev_b32 v255, 7, v1")
        e(f"s_and_b32 s46, {sR}, 15")
        e(f"s_lshl_b32 s47, {sX}, 19")
        e("s_lshl_b32 s45, s46, 15")
        e("s_add_u32 s47, s47, s45")
        e(f"s_lshl_b32 s45, {sW}, 13")
        e("s_add_u32 s47, s47, s45")
        t0x("s48")
        e("s_lshl_b32 s48, s48, 14")
        e("s_mul_i32 s46, s46, 12288")
        e("s_add_u32 s48, s48, s46")
        e(f"s_and_b32 s45, {sW}, 1")
        e("s_mul_i32 s45, s45, 6144")
        e("s_add_u32 s48, s48, s45")
        e(f"s_cmp_lt_u32 {sW}, 4")
        e("s_cselect_b32 s47, s47, s48")
        e("s_cselect_b32 s20, s28, s36")
        e("s_cselect_b32 s21, s29, s37")
        e("s_cselect_b32 s22, s30, s38")
        e(f"s_cmp_lt_u32 {sW}, 6")
        e("s_cselect_b32 s22, s22, 0")
        e("s_mov_b32 s23, 0x00020000")
def p3w():
    e(f"s_lshl_b32 s46, {sW}, 12")
    for i in range(4):
        e(f"s_add_u32 m0, s46, {A_WO + i*1024}")
        e(f"s_add_u32 s45, s101, {i*8192}")
        dma(243 + (i & 1), SD, "s45", "nt")
    e(f"s_lshl_b32 s46, {sW}, 10")
    e(f"s_add_u32 m0, s46, {A_W2}")
    e(f"s_cmp_gt_u32 {sW}, 3")
    dma(245, SF, "s100", "nt")
    e("s_cbranch_scc1 L_a_now2")
    e(f"s_add_u32 m0, s46, {A_W2 + 8192}")
    e("s_add_u32 s45, s100, 65536")
    dma(245, SF, "s45", "nt")
    lab("L_a_now2")
if P["a_nat"]:
    a_addr()
    c("the bulk stream starts once the lines the weight CUs wait for are in")
    e("s_waitcnt vmcnt(0)")
    e("s_barrier")
    a_loop()
else:
    a_loop()
    a_addr()
c("Q rows may be read only after their producers have marked them empty")
e(f"s_waitcnt vmcnt({16 - P['a_fpos']}) lgkmcnt(0)")
e(f"s_add_u32 {sTAG}, {sTAG}, 1")
e(f"s_mov_b32 {sCNT}, 0")
e(f"v_cmp_ne_u32 vcc, {sTAG}, v239")
e("s_mov_b64 s[48:49], vcc")
e("s_cbranch_vccz L_a_q1")
e("s_waitcnt vmcnt(0)")
e("s_branch L_a_land")
lab("L_a_q1")
if P["a_qk"] < 63: e(f"s_waitcnt vmcnt({P['a_qk']})")
e(f"buffer_load_dwordx4 v[224:227], v8, {SWS}, s63 offen sc1")
e(f"buffer_load_dwordx4 v[228:231], v8, {SWS}, s63 offen offset:1024 sc1")
e("s_waitcnt vmcnt(2)")
lab("L_a_land")
if P["s2_gate"]:
    e(f"s_cmp_lg_u32 {sW}, 7")
    e("s_cbranch_scc1 L_a_nock")
    e(f"s_lshl_b32 s45, {sX}, 5")
    e(f"s_add_u32 s45, s45, {sR}")
    e("s_lshl_b32 s45, s45, 2")
    e(f"s_add_u32 s45, s45, {CKF - 64}")
    e(f"v_mov_b32 v6, {sTAG}")
    e("s_mov_b64 exec, 1")
    e(f"buffer_store_dword v6, v7, {SWS}, s45 offen")
    e("s_mov_b64 exec, -1")
    lab("L_a_nock")
if P["x_dbg"]: e("s_memrealtime s[68:69]")
stamp(2)
if P["x_exit"]: e("s_branch L_a_fin")
e("s_barrier")
c("key-tile fragments into registers")
for s in range(16):
    rd128(32 + 4*s, 12 + (s & 3), (s >> 2)*256)
def mk_trs():
    trs = []
    for t in range(4):
        for tp in range(4):
            base = 96 + (tp*4 + t)*4
            areg = (16 if t < 2 else 24) + tp
            trs.append((base, areg, (t & 1)*32768))
            trs.append((base + 2, areg, (t & 1)*32768 + 16384))
    return trs
def q_check(ok):
    e("v_max3_u32 v4, v224, v225, v226")
    e("v_max3_u32 v5, v227, v228, v229")
    e("v_max3_u32 v4, v4, v230, v231")
    e("v_max_u32 v4, v4, v5")
    e("v_cmp_eq_u32 vcc, -1, v4")
    e(f"s_cbranch_vccz {ok}")
def q_load():
    e(f"buffer_load_dwordx4 v[224:227], v8, {SWS}, s63 offen sc1")
    e(f"buffer_load_dwordx4 v[228:231], v8, {SWS}, s63 offen offset:1024 sc1")
def qk(deferred):
    trs = mk_trs() if deferred else []
    def trn(n):
        for _ in range(min(n, len(trs))): tr(*trs.pop(0))
    if P["x_dbg"]: e("s_memrealtime s[70:71]")
    stamp(3)
    e("ds_write_b128 v28, v[224:227]")
    e("ds_write_b128 v29, v[228:231] offset:1024")
    npre = P["tr_pre"] if deferred else 0
    trn(npre)
    e(f"s_waitcnt lgkmcnt({npre})")
    e("s_barrier")
    stamp(4)
    if P["qk_stag"]:
        e(f"s_cmp_lt_u32 {sW}, 4")
        e(f"s_cbranch_scc1 L_a_st{int(deferred)}")
        e(f"s_sleep {P['qk_stag']}")
        lab(f"L_a_st{int(deferred)}")
    nb = 12 if deferred else 16
    for s in range(nb):
        rd128(160 + 4*s, 20 + (s & 3), (s >> 2)*256)
    if P["w_pf"] == 2:
        e(f"buffer_load_dword v253, v255, s[20:23], s47 offen")
    issued = 0
    for s in range(16):
        younger = (11 if s < 4 else 15 - s) + issued if deferred else 15 - s
        e(f"s_waitcnt lgkmcnt({younger})")
        mfma(232, 32 + 4*s, 160 + 4*s, None if s == 0 else 232)
        if deferred and s < 4:
            rd128(160 + 4*(s + 12), 20 + (s & 3), 3*256)
        if deferred and s >= 3 and s < 15:
            n = min((s + 1) - issued, len(trs))
            trn(n); issued += n
    e("s_nop 7")
    e("v_max3_f32 v4, v232, v233, v234")
    e("v_max_f32 v4, v4, v235")
    e("ds_max_f32 v30, v4")
    n = min(8, len(trs))
    trn(n)
    e(f"s_waitcnt lgkmcnt({n})")
    e("s_barrier")
    stamp(5)
    e("ds_read_b32 v4, v30")
    e("s_waitcnt lgkmcnt(0)")
    trn(len(trs))
e("s_cmp_lg_u64 s[48:49], 0")
e("s_cbranch_scc1 L_a_slow0")
e("s_waitcnt vmcnt(0)")
q_check("L_a_fast")
q_load()
lab("L_a_slow0")
c("Q is late: the transposed c_kv fragments for P.V are read while waiting")
for t_ in mk_trs(): tr(*t_)
e("s_cmp_eq_u64 s[48:49], 0")
e("s_cbranch_scc1 L_a_q")
lab("L_a_flg")
e(f"buffer_load_dword v239, v238, {SWS}, s62 offen sc1")
e(f"s_add_u32 {sCNT}, {sCNT}, 1")
e("s_waitcnt vmcnt(0)")
e(f"v_cmp_ne_u32 vcc, {sTAG}, v239")
e("s_cbranch_vccz L_a_qre")
e(f"s_cmp_lt_u32 {sCNT}, {TMO}")
e("s_cbranch_scc1 L_a_flg")
lab("L_a_qre")
q_load()
lab("L_a_q")
e("s_waitcnt vmcnt(0)")
q_check("L_a_qok")
e(f"s_add_u32 {sCNT}, {sCNT}, 1")
e(f"s_cmp_lt_u32 {sCNT}, {TMO}")
e("s_cbranch_scc1 L_a_qre")
lab("L_a_qok")
c("scores for key tile w")
qk(False)
e("s_branch L_a_sm")
lab("L_a_fast")
c("same, with the transposed fragments read behind the Q fragments")
qk(True)
lab("L_a_sm")
e("v_mul_f32 v4, s97, v4")
for k in range(4):
    e(f"v_fma_f32 v{232+k}, v{232+k}, s97, -v4")
for k in range(4):
    e(f"v_exp_f32 v{232+k}, v{232+k}")
e("s_nop 0")
e("v_cvt_pk_bf16_f32 v160, v232, v233")
e("v_cvt_pk_bf16_f32 v161, v234, v235")
e("v_add_f32 v232, v232, v233")
e("v_add_f32 v234, v234, v235")
e("ds_write_b64 v31, v[160:161]")
e("v_add_f32 v232, v232, v234")
e("ds_write_b32 v254, v232")
e("s_waitcnt lgkmcnt(0)")
e("s_barrier")
stamp(6)
for t in range(4):
    rd128(160 + 4*t, 236, t*1024)
c("P.V for c range w; a finished tile is packed and staged under the next tile's MFMAs")
OW = (246, 247, 240, 241)
def o_pack(tp):
    e(f"v_cvt_pk_bf16_f32 v{192+2*tp}, v{176+4*tp}, v{177+4*tp}")
    e(f"v_cvt_pk_bf16_f32 v{193+2*tp}, v{178+4*tp}, v{179+4*tp}")
    e(f"ds_write_b64 v{OW[tp]}, v[{192+2*tp}:{193+2*tp}]")
if P["pvt"]:
    for t in range(4):
        e(f"s_waitcnt lgkmcnt({3 - t})")
        for tp in (0, 1):
            mfma(176 + 4*tp, 96 + (tp*4 + t)*4, 160 + 4*t, None if t == 0 else 176 + 4*tp)
    k = 0
    for t in range(4):
        for tp in (2, 3):
            mfma(176 + 4*tp, 96 + (tp*4 + t)*4, 160 + 4*t, None if t == 0 else 176 + 4*tp)
            k += 1
            if k == 6:
                e("s_nop 0"); o_pack(0)
            if k == 7: o_pack(1)
    e("s_nop 3")
    o_pack(2)
    e("s_nop 0")
    o_pack(3)
else:
    for t in range(4):
        e(f"s_waitcnt lgkmcnt({3 - t})")
        for tp in range(4):
            mfma(176 + 4*tp, 96 + (tp*4 + t)*4, 160 + 4*t, None if t == 0 else 176 + 4*tp)
    e("s_nop 4")
    for tp in range(4): o_pack(tp)
e("ds_read_b128 v[208:211], v248")
e("ds_read_b128 v[212:215], v248 offset:1024")
c("row checksums: every lane adds up its 8 dwords, the statistics wave adds the 8 parts of a row")
e("v_add3_u32 v216, v192, v193, v194")
e("v_add3_u32 v217, v195, v196, v197")
e("v_add3_u32 v216, v216, v198, v199")
e("v_add_u32 v216, v216, v217")
e("ds_write_b32 v249, v216")
e("s_add_u32 s45, s61, 0x80000")
e("s_waitcnt lgkmcnt(2)")
e(f"buffer_store_dwordx4 v[208:211], v237, {SWS}, s61 offen sc1")
e("s_waitcnt lgkmcnt(1)")
e(f"buffer_store_dwordx4 v[212:215], v237, {SWS}, s45 offen sc1")
e(f"s_cmp_eq_u32 {sW}, 0")
e("s_cbranch_scc1 L_a_stat")
e("s_waitcnt lgkmcnt(0)")
e("s_barrier")
e("s_branch L_a_nost")
lab("L_a_stat")
for k in range(4):
    e(f"ds_read2st64_b32 v[{200+2*k}:{201+2*k}], v242 offset0:{2*k} offset1:{2*k+1}")
e(f"v_mov_b32 v7, {sTAG}")
e("s_waitcnt lgkmcnt(0)")
e("v_add_f32 v200, v200, v201")
e("v_add_f32 v202, v202, v203")
e("v_add_f32 v204, v204, v205")
e("v_add_f32 v206, v206, v207")
e("v_add_f32 v200, v200, v202")
e("v_add_f32 v204, v204, v206")
e("v_add_f32 v5, v200, v204")
swap_reduce("add", 5, 200, 16)
swap_reduce("add", 5, 200, 32)
e("s_barrier")
for k in range(4):
    e(f"ds_read2_b32 v[{216+2*k}:{217+2*k}], v9 offset0:{32*k} offset1:{32*k+16}")
if P["st_sleep"]: e(f"s_sleep {P['st_sleep']}")
e("s_waitcnt lgkmcnt(2)")
e("v_add3_u32 v6, v216, v217, v218")
e("s_waitcnt lgkmcnt(0)")
e("v_add3_u32 v220, v220, v221, v222")
e("v_add3_u32 v6, v6, v219, v223")
e("v_add_u32 v6, v6, v220")
e(f"buffer_store_dwordx4 v[4:7], v8, {SWS}, s96 offen sc1")
lab("L_a_nost")
stamp(7)
if P["x_dbg"]: e("s_memrealtime s[72:73]")
if not P["p3w_early"]: p3w()
c("addresses of the output projection")
e("v_lshrrev_b32 v4, 2, v2")
e("v_and_b32 v5, 3, v2")
e("v_lshl_add_u32 v31, v3, 3, v4")
e("v_lshrrev_b32 v50, 1, v4")
e("v_and_b32 v51, 1, v3")
e("v_lshl_or_b32 v50, v51, 1, v50")
e(f"s_and_b32 s45, {sW}, 3")
e("v_xor_b32 v50, s45, v50")
e("v_lshlrev_b32 v50, 5, v50")
e("v_lshl_add_u32 v50, v5, 3, v50")
e("v_lshl_add_u32 v50, v31, 7, v50")
e("v_and_b32 v32, 1, v2")
e("v_lshrrev_b32 v36, 1, v2")
e("v_lshlrev_b32 v36, 3, v36")
e("v_lshl_add_u32 v36, v3, 1, v36")
e(f"s_lshl_b32 s45, {sW}, 6")
e("v_add_u32 v36, s45, v36")
e(f"v_mul_u32_u24 v38, {KBS}, v32")
e("v_add_u32 v36, v36, v38")
e("v_lshrrev_b32 v35, 1, v1")
e("v_lshl_add_u32 v35, v35, 3, v38")
e(f"s_and_b32 s45, {sW}, 1")
e("s_lshl_b32 s45, s45, 8")
e("v_add_u32 v35, s45, v35")
e("v_lshl_add_u32 v38, v3, 4, v38")
e("v_lshlrev_b32 v49, 3, v2")
e("v_lshl_add_u32 v49, v3, 1, v49")
e("s_lshl_b32 s100, s57, 10")
e("s_add_u32 s100, s100, s99")
e(f"buffer_load_ushort v180, v49, {SX}, s100 offen")
e("v_lshlrev_b32 v92, 12, v3")
e("v_lshl_add_u32 v92, v2, 4, v92")
e("v_lshlrev_b32 v93, 8, v2")
e("v_lshl_add_u32 v93, v3, 4, v93")
e(f"s_lshl_b32 s46, {sW}, 6")
e("v_add_u32 v93, s46, v93")
e("s_lshl_b32 s59, s98, 13")
e(f"s_lshl_b32 s46, {sX}, 9")
e("s_add_u32 s59, s59, s46")
e("s_lshl_b32 s46, s57, 8")
e("s_add_u32 s59, s59, s46")
e(f"s_add_u32 s59, s59, {OUTP}")
e(f"s_lshl_b32 s60, {sX}, 14")
e("s_lshl_b32 s47, s57, 13")
e("s_add_u32 s60, s60, s47")
if P["inl"]:
    e(f"s_and_b32 s47, {sW}, 1")
    e("s_lshl_b32 s47, s47, 12")
    e("s_add_u32 s60, s60, s47")
else:
    e("v_lshlrev_b32 v34, 10, v3")
    e("v_lshl_add_u32 v34, v2, 4, v34")
    e(f"s_lshr_b32 s47, {sW}, 2")
    e("s_lshl_b32 s47, s47, 12")
    e("s_add_u32 s60, s60, s47")
    e(f"s_and_b32 s47, {sW}, 3")
    e("s_lshl_b32 s47, s47, 8")
    e("s_add_u32 s60, s60, s47")
e(f"s_add_u32 s61, s60, {CPB}")
e(f"s_add_u32 s60, s60, {CPA}")
if P["stamps"] == 3:
    e("s_waitcnt vmcnt(7)")
    stamp(8)
    e("s_waitcnt vmcnt(0)")
    stamp(15)
e(f"s_cmp_lt_u32 {sW}, 4")
e("s_cbranch_scc1 L_a_nohg")
e(f"s_cmp_eq_u32 {sW}, 7")
e("s_cbranch_scc1 L_a_nohg")
c("waves 4-6: sum the 16 partials of 16 granules of h, SiLU")
e(f"s_cmp_ge_u32 {sX}, 6")
e("s_cselect_b32 s45, 10, 11")
e("s_lshl_b32 s45, s45, 3")
e("s_mul_i32 s46, s57, 48")
e("s_sub_u32 s45, s45, s46")
e(f"s_lshl_b32 s46, {sW}, 4")
e("s_sub_u32 s46, s46, 64")
e("v_add_u32 v60, s46, v2")
e("v_cmp_gt_u32 s[46:47], s45, v60")
e(f"s_lshl_b32 s48, {sX}, 15")
e("s_mul_i32 s49, s57, 768")
e("s_add_u32 s48, s48, s49")
e(f"s_lshl_b32 s49, {sW}, 8")
e("s_add_u32 s48, s48, s49")
e(f"s_add_u32 s48, s48, {HPA - 1024}")
e(f"s_add_u32 s49, s48, {HPB-HPA}")
e("v_lshlrev_b32 v60, 11, v3")
e("v_lshl_add_u32 v60, v2, 4, v60")
e("v_add_u32 v61, 0x2000, v60")
e("v_add_u32 v62, 0x4000, v60")
e("v_add_u32 v63, 0x6000, v60")
dual_poll4("hh", 64, [60, 61, 62, 63], "s48", "s49", "s[46:47]", lr=P["lr2"])
sum4_reduce(64)
round_bf16(64)
e("v_mul_f32 v65, 0xbfb8aa3b, v64")
e("v_exp_f32 v65, v65")
e("s_nop 0")
e("v_add_f32 v65, 1.0, v65")
e("v_rcp_f32 v65, v65")
e("s_nop 0")
e("v_mul_f32 v64, v64, v65")
e("v_cndmask_b32 v64, 0, v64, s[46:47]")
e("v_cvt_pk_bf16_f32 v64, v64, v64")
e(f"ds_write_b16 v36, v64 offset:{KB + 256}")
lab("L_a_nohg")
e("s_waitcnt vmcnt(0) lgkmcnt(0)")
stamp(9)
e("s_barrier")
e(f"s_cmp_gt_u32 {sW}, 3")
e("s_cbranch_scc1 L_a_nofrag")
for s in range(3):
    rd128(60 + 4*s, 38, KB + 512 + s*64)
    tr(144 + 4*s, 50, A_W2 + s*4096)
    tr(146 + 4*s, 50, A_W2 + s*4096 + 512)
for s in range(8):
    tr(112 + 4*s, 50, A_WO + s*4096)
    tr(114 + 4*s, 50, A_WO + s*4096 + 512)
e("s_waitcnt lgkmcnt(0)")
for s in range(3):
    mfma(176, 144 + 4*s, 60 + 4*s, None if s == 0 else 176)
if P["inl"]:
    e("s_branch L_a_noh25")
    lab("L_a_nofrag")
    e(f"s_cmp_gt_u32 {sW}, 5")
    e("s_cbranch_scc1 L_a_noh25")
    stamp(10)
    dual_poll4("h25", 64, [8, 8, 8, 8], "s60", "s61", lr=P["lr2"], offs=(0, 1024, 2048, 3072))
    stamp(11)
    if P["x_dbg"]: e("s_memrealtime s[74:75]")
    sum4(64)
    e("v_cvt_pk_bf16_f32 v64, v64, v65")
    e("v_cvt_pk_bf16_f32 v65, v66, v67")
    e(f"ds_write_b64 v35, v[64:65] offset:{KB}")
    e("s_waitcnt lgkmcnt(0)")
else:
    lab("L_a_nofrag")
    stamp(10)
    dual_poll("h25", 72, 34, "s60", "s61", lr=P["lr2"])
    stamp(11)
    unpack_granule(72)
    halving_reduce(72)
    e("v_cvt_pk_bf16_f32 v72, v72, v72")
    e(f"ds_write_b16 v36, v72 offset:{KB}")
    e("s_waitcnt lgkmcnt(0)")
lab("L_a_noh25")
e("s_barrier")
e(f"s_cmp_gt_u32 {sW}, 3")
e("s_cbranch_scc1 L_a_nop3b")
c("P3b: 64 output columns over two heads (the FFN part is already in the accumulator)")
for s in range(8):
    rd128(56 + 4*s, 38, KB + s*64)
for s in range(8):
    e(f"s_waitcnt lgkmcnt({7 - s})")
    mfma(176, 112 + 4*s, 56 + 4*s, 176)
e("s_nop 7")
pack_granule(88, 176)
e(f"s_mov_b64 exec, {sM2}")
e(f"ds_write_b128 v93, v[88:91] offset:{KB + 2048}")
e("s_mov_b64 exec, -1")
e("s_waitcnt lgkmcnt(0)")
lab("L_a_nop3b")
e("s_barrier")
e(f"s_cmp_lg_u32 {sW}, 4")
e("s_cbranch_scc1 L_a_fin")
e("s_mov_b32 exec_hi, 0")
rd128(88, 8, KB + 2048)
e(f"s_and_b32 s48, {sR}, 15")
e("s_lshl_b32 s48, s48, 12")
e(f"s_add_u32 s48, s48, {OUTP}")
e("s_waitcnt lgkmcnt(0)")
e(f"buffer_store_dwordx4 v[88:91], v92, {SWS}, s59 offen sc1")
e("s_mov_b64 exec, -1")
stamp(12)
e(f"s_cmp_lg_u32 {sX}, s98")
e("s_cbranch_scc1 L_a_fin")
c("reducer for (column slice ms, batch r&1): 16 partials")
if P["red_sleep"] == 99: e("s_waitcnt vmcnt(0)")
elif P["red_sleep"]: e(f"s_sleep {P['red_sleep']}")
dual_poll4("red", 64, [8, 8, 8, 8], "s48", "s48", offs=(0, 1024, 2048, 3072))
stamp(13)
sum4_reduce(64)
e("v_lshlrev_b32 v180, 16, v180")
e("v_add_f32 v64, v64, v180")
e("v_cvt_pk_bf16_f32 v64, v64, v64")
e(f"buffer_store_short v64, v49, {SO}, s100 offen {'sc1' if P['out_sc1'] == 1 else 'sc0 sc1' if P['out_sc1'] == 2 else 'nt' if P['out_sc1'] == 3 else ''}")
e(f"s_cmpk_lg_u32 s2, {4 if P['xmap'] else 0x80}")
e("s_cbranch_scc1 L_a_fin")
e(f"v_mov_b32 v57, {sTAG}")
e("v_mov_b32 v58, 0")
e("s_mov_b64 exec, 1")
e(f"buffer_store_dword v57, v58, {SWS}, 0 offen sc1")
if P["x_amp"]:
    e("s_memrealtime s[66:67]")
    e("s_waitcnt lgkmcnt(0)")
    e(f"s_sub_u32 s45, s{P['x_amp']}, s64")
    e("s_lshl_b32 s45, s45, 2")
    e("s_add_u32 s45, s45, s66")
    lab("L_amp")
    e("s_memrealtime s[46:47]")
    e("s_waitcnt lgkmcnt(0)")
    e("s_sub_u32 s46, s46, s45")
    e("s_cmp_lt_i32 s46, 0")
    e("s_cbranch_scc1 L_amp")
elif P["x_dbg"]:
    e("s_load_dwordx2 s[20:21], s[0:1], 80")
    e("s_memrealtime s[66:67]")
    srd(20, 256)
    e("s_waitcnt lgkmcnt(0)")
    for k, r_ in enumerate((66, 68, 70, 72, 74)):
        e(f"s_sub_u32 s45, s{r_}, s64")
        e("v_mov_b32 v57, s45")
        e(f"buffer_store_dword v57, v58, s[20:23], 0 offen offset:{4*k}")
for _ in range(P["x_endsleep"]): e("s_sleep 127")
lab("L_a_fin")
stamp(14)
dump_stamps()
lab("L_end")
e("s_endpgm")
lab("L_codeend")
out.append('.section .rodata,"a"')
out.append(".p2align 6")
out.append(f".amdhsa_kernel {KN}")
out.append("""  .amdhsa_next_free_vgpr 256
  .amdhsa_next_free_sgpr 102
  .amdhsa_accum_offset 256
  .amdhsa_group_segment_fixed_size 0
  .amdhsa_kernarg_size 96
  .amdhsa_user_sgpr_count 2
  .amdhsa_user_sgpr_kernarg_segment_ptr 1
  .amdhsa_system_sgpr_workgroup_id_x 1
.end_amdhsa_kernel""")
open(sys.argv[1], "w").write("\n".join(out) + "\n")
```

```python
import sys
NAME = "parallel_sum__compressed_kv_cla__dense_activation_silu__decode"
KN = NAME + "_kernel"

P = dict(
    stamps=0,
    a_delay=0,
    a_win=63,
    a_nwin=0,
    red_sleep=12,
    localrounds=16,
    x_exit=0, x_s2=0, x_wc=0, x_half=0,
    a_fpos=12,
    a_win2=3,
    w_win=63,
    p3w_early=0,
    w_pf=2,
    h0_k=2,
    s2_gate=0,
    h0_sleep=0,
    a_lag=4,
    nt=0,
    nt_ckv=0,
    x_dbg=0, x_amp=0, x_endsleep=0, x_startsleep=0,
    st_sleep=0,
    pf_nt=0,
    xmap=0,
    lr2=32,
    out_lds=1,
    a_qk=1,
    w_ckv=1,
    w_ckv_ord=0,
    a_pf=2,
    qk_stag=0,
    smask=0xffff,
    tr_pre=8,
    out_sc1=0, x_noloc=0,
    w_slow=0,
    inl=0, pvt=1,
    a_nat=1, w_nat=1,
    h2w=1,
    a_mid=2,
    q_when=0,
    o_st=0, o_pre=0, st_x=1, hint=0, hint_d=30, hint_spec=1,
    ffn_early=1, bo_st=0, bo_q=0, bo_h25=0,
    o_swz=0,
    w2_delay=0,
)
for a in sys.argv[2:]:
    k, v = a.split("=")
    assert k in P, k
    P[k] = int(v, 0)

EPOCH = 0x0
FLG = 0x4000
CKF = 0x2000
QPA, QPB = 0x10000, 0x30000
QA = 0x50000
ST = 0x340000
HINT = 0x8000
HPA, HPB = 0xC0000, 0x300000
CPA, CPB = 0x70000, 0x90000
OUTP = 0xB0000
OP = 0x100000
TS = 0x400000
WS_BYTES = 0x10000000
R0 = 0
XN = 32768; XNS = 1088
QL = XN + 2304; QLS = 320
QST = XN + 2944
WT = XN + 5248; WTS = 192
FLAGL = XN + 5632
CKT = XN + 5760
R1, W1L, OIN = 38912, 83968, 100352
A_QL, A_PL, A_MX, A_SM = 131072, 147456, 151552, 152064
A_CK = 81920
A_OT = 65536
A_WO, A_W2, KB = 0, 32768, 45056
KBS = 832
LDS_BYTES = 154880
TMO = 1 << 18

out = []
def e(s): out.append("  " + s)
def lab(s): out.append(s + ":")
def c(s): out.append("  ; " + s)

sX, sR, sW, sH, sJ = "s3", "s4", "s5", "s6", "s7"
SX, SWS, SA, SB, SC, SD, SE, SF, SO = (f"s[{i}:{i+3}]" for i in (8, 12, 16, 20, 24, 28, 32, 36, 40))
sTAG = "s44"
sPK0, sPK1, sPK2, sUP = "s50", "s51", "s52", "s53"
sM2 = "s[54:55]"
sCNT = "s56"
def stamp(k):
    if P["stamps"] and (P["smask"] >> k) & 1:
        e(f"s_{'memtime' if P['stamps'] == 4 else 'memrealtime'} s[{64+2*k}:{65+2*k}]")
def dump_stamps():
    if not P["stamps"]: return
    e("s_mov_b64 exec, -1")
    e("s_waitcnt lgkmcnt(0)")
    if P["stamps"] == 2:
        e("s_getreg_b32 s94, hwreg(HW_REG_HW_ID)")
    for k in range(16):
        e(f"v_writelane_b32 v250, s{64+2*k}, {k}")
    e("s_lshl_b32 s45, s2, 9")
    e(f"s_lshl_b32 s46, {sW}, 6")
    e("s_add_u32 s45, s45, s46")
    e(f"s_add_u32 s45, s45, {TS}")
    e("v_lshlrev_b32 v251, 2, v1")
    e("s_mov_b64 exec, 0xffff")
    e(f"buffer_store_dword v250, v251, {SWS}, s45 offen")

def srd(idx, nbytes):
    e(f"s_mov_b32 s{idx+2}, {nbytes}")
    e(f"s_mov_b32 s{idx+3}, 0x00020000")
def pack_granule(g, a):
    e(f"v_perm_b32 v{g}, v{a}, v{a+3}, {sPK0}")
    e(f"v_perm_b32 v{g+1}, v{a+1}, v{a+3}, {sPK1}")
    e(f"v_perm_b32 v{g+2}, v{a+2}, v{a+3}, {sPK2}")
    e(f"v_mov_b32 v{g+3}, {sTAG}")
def unpack_granule(g):
    e(f"v_perm_b32 v{g+3}, v{g+1}, v{g}, {sUP}")
    e(f"v_lshl_or_b32 v{g+3}, v{g+2}, 24, v{g+3}")
def halving_reduce(g):
    e("s_nop 1")
    e(f"v_permlane32_swap_b32 v{g}, v{g+2}")
    e(f"v_permlane32_swap_b32 v{g+1}, v{g+3}")
    e("s_nop 0")
    e(f"v_add_f32 v{g}, v{g}, v{g+2}")
    e(f"v_add_f32 v{g+1}, v{g+1}, v{g+3}")
    e("s_nop 1")
    e(f"v_permlane16_swap_b32 v{g}, v{g+1}")
    e("s_nop 0")
    e(f"v_add_f32 v{g}, v{g}, v{g+1}")
def dual_poll(name, dst, voff, sA, sB, first_extra=None, after_first="vmcnt(0)", lr=None, bo=0):
    lr = P["localrounds"] if lr is None else lr
    if lr == 0: sA = sB
    e(f"s_mov_b32 {sCNT}, 0")
    e(f"buffer_load_dwordx4 v[{dst}:{dst+3}], v{voff}, {SWS}, {sA} offen sc1")
    if first_extra: first_extra()
    e(f"s_waitcnt {after_first}")
    lab(f"L_{name}_chk")
    e(f"v_cmp_ne_u32 vcc, {sTAG}, v{dst+3}")
    e(f"s_cbranch_vccz L_{name}_ok")
    e(f"s_add_u32 {sCNT}, {sCNT}, 1")
    e(f"s_cmp_gt_u32 {sCNT}, {TMO}")
    e(f"s_cbranch_scc1 L_{name}_ok")
    if sA != sB:
        e(f"s_cmp_gt_u32 {sCNT}, {lr}")
        e(f"s_cselect_b32 s45, {sCNT}, 0")
        e("s_and_b32 s45, s45, 3")
        e("s_cmp_eq_u32 s45, 3")
        e(f"s_cselect_b32 s45, {sB}, {sA}")
    else:
        e(f"s_mov_b32 s45, {sA}")
    if bo: e(f"s_sleep {bo}")
    e(f"buffer_load_dwordx4 v[{dst}:{dst+3}], v{voff}, {SWS}, s45 offen sc1")
    e("s_waitcnt vmcnt(0)")
    e(f"s_branch L_{name}_chk")
    lab(f"L_{name}_ok")
def dual_poll4(name, dst, voffs, sA, sB, valid=None, lr=None, offs=(0, 0, 0, 0), first=None):
    lr = P["localrounds"] if lr is None else lr
    if lr == 0: sA = sB
    e(f"s_mov_b32 {sCNT}, 0")
    e(f"s_mov_b32 s45, {sA}")
    if first:
        for i in range(4):
            e(f"buffer_load_dwordx4 v[{dst+4*i}:{dst+4*i+3}], v{voffs[i]}, {SWS}, s45 offen offset:{offs[i]} sc1")
        n = first()
        e(f"s_waitcnt vmcnt({n})")
        e(f"s_branch L_{name}_chk")
    lab(f"L_{name}_ld")
    for i in range(4):
        e(f"buffer_load_dwordx4 v[{dst+4*i}:{dst+4*i+3}], v{voffs[i]}, {SWS}, s45 offen offset:{offs[i]} sc1")
    e(f"s_add_u32 {sCNT}, {sCNT}, 1")
    if sA != sB:
        e(f"s_cmp_gt_u32 {sCNT}, {lr}")
        e(f"s_cselect_b32 s45, {sCNT}, 0")
        e("s_and_b32 s45, s45, 3")
        e("s_cmp_eq_u32 s45, 3")
        e(f"s_cselect_b32 s45, {sB}, {sA}")
    else:
        e(f"s_mov_b32 s45, {sA}")
    e("s_waitcnt vmcnt(0)")
    lab(f"L_{name}_chk")
    t = dst + 16
    for i in range(4):
        e(f"v_xor_b32 v{t+i}, {sTAG}, v{dst+4*i+3}")
    e(f"v_or3_b32 v{t}, v{t}, v{t+1}, v{t+2}")
    e(f"v_or_b32 v{t}, v{t}, v{t+3}")
    e(f"v_cmp_ne_u32 vcc, 0, v{t}")
    if valid:
        e(f"s_and_b64 vcc, vcc, {valid}")
        e(f"s_cbranch_scc0 L_{name}_ok")
    else:
        e(f"s_cbranch_vccz L_{name}_ok")
    e(f"s_cmp_lt_u32 {sCNT}, {TMO}")
    e(f"s_cbranch_scc1 L_{name}_ld")
    lab(f"L_{name}_ok")
def sum4(dst):
    for i in range(4):
        unpack_granule(dst + 4*i)
    for k in range(4):
        e(f"v_add_f32 v{dst+k}, v{dst+k}, v{dst+4+k}")
        e(f"v_add_f32 v{dst+8+k}, v{dst+8+k}, v{dst+12+k}")
    for k in range(4):
        e(f"v_add_f32 v{dst+k}, v{dst+k}, v{dst+8+k}")
def sum4_reduce(dst):
    sum4(dst)
    halving_reduce(dst)
def mfma(d, a, b, cc):
    cs = "0" if cc is None else f"v[{cc}:{cc+3}]"
    e(f"v_mfma_f32_16x16x32_bf16 v[{d}:{d+3}], v[{a}:{a+3}], v[{b}:{b+3}], {cs}")
def dma(voff, srd_, soff, flags, off=0, shared=False):
    if flags == "nt" and not P["nt_ckv" if srd_ in (SD, SF) or shared else "nt"]: flags = ""
    o = f" offset:{off}" if off else ""
    e(f"buffer_load_dwordx4 v{voff}, {srd_}, {soff} offen{o} {flags} lds")
def row_allreduce16(op, v):
    for ctl in ("quad_perm:[1,0,3,2]", "quad_perm:[2,3,0,1]", "row_half_mirror", "row_mirror"):
        e("s_nop 1")
        e(f"v_{op}_f32_dpp v{v}, v{v}, v{v} {ctl} row_mask:0xf bank_mask:0xf")
def oct_reduce_u32(vs):
    for ctl in ("quad_perm:[1,0,3,2]", "quad_perm:[2,3,0,1]", "row_half_mirror"):
        e("s_nop 1" if len(vs) == 1 else "s_nop 0")
        for v in vs:
            e(f"v_add_u32_dpp v{v}, v{v}, v{v} {ctl} row_mask:0xf bank_mask:0xf")
def swap_reduce(op, v, t, which):
    e(f"v_mov_b32 v{t}, v{v}")
    e("s_nop 1")
    e(f"v_permlane{which}_swap_b32 v{v}, v{t}")
    e("s_nop 0")
    e(f"v_{op}_f32 v{v}, v{v}, v{t}")
def round_bf16(v):
    e(f"v_cvt_pk_bf16_f32 v{v}, v{v}, v{v}")
    e(f"v_lshlrev_b32 v{v}, 16, v{v}")
def tr(dst, addr, off):
    e(f"ds_read_b64_tr_b16 v[{dst}:{dst+1}], v{addr} offset:{off}")
def rd128(dst, addr, off):
    e(f"ds_read_b128 v[{dst}:{dst+3}], v{addr} offset:{off}")

hdr = open("cdna_kernels/" + NAME + ".s.ref").read().split("; Override launch")[0]
out.append(hdr.rstrip())
out.append(f"; @launch grid=(256,1,1) block=(512,1,1) lds={LDS_BYTES}")
out.append('.amdgcn_target "amdgcn-amd-amdhsa--gfx950"')
out.append(".text")
out.append("""; ------------------------------------------------------------------------------------------------
; One persistent launch, one workgroup per CU (x = id & 7, r = id >> 3).  Absorbed form of the attention:
; r >= 16 "attention CU" (16 heads x 128 keys): scores, softmax, P.V, then 64 output columns over a head pair
; the tag back.  Small vectors travel as 16-byte granules {3 x 24-bit-rounded floats carrying a 4th, tag}; Qa rows are
; marked empty first (flag) and recognised by content; O rows are checked against a checksum in their statistics
; write-through copy that the reader falls back to, so no placement is assumed.  Every wait is bounded.
; ------------------------------------------------------------------------------------------------""")
out.append(f".globl {KN}")
out.append(".p2align 8")
out.append(f".type {KN},@function")
lab(KN)
c("the first 256 bytes hold everything waves 0-3 of a weight CU need to start the w_q stream")
stamp(0)
if P["x_dbg"]: e("s_memrealtime s[64:65]")
for _ in range(P["x_startsleep"]): e("s_sleep 127")
e("s_load_dwordx2 s[16:17], s[0:1], 16")
e("s_load_dwordx2 s[8:9], s[0:1], 0")
e("s_getpc_b64 s[46:47]")
lab("L_pc")
e("v_lshlrev_b32 v5, 7, v0")
e("s_cmpk_ge_u32 s2, 0x100")
e("s_cbranch_scc1 L_end")
e("v_min_u32 v5, L_codeend-L_pc-4, v5")
e("v_lshrrev_b32 v4, 6, v0")
e("global_load_dword v252, v5, s[46:47]")
e(f"v_readfirstlane_b32 {sW}, v4")
e(f"s_lshr_b32 {sR}, s2, 3")
e(f"s_and_b32 {sX}, s2, {3 if P['xmap'] else 7}")
e("v_and_b32 v2, 15, v0")
e("v_bfe_u32 v3, v0, 4, 2")
if P["xmap"]: e("s_bitcmp1_b32 s2, 2")
else: e(f"s_cmp_ge_u32 {sR}, 16")
e("s_cbranch_scc1 L_A")
e(f"s_lshr_b32 s45, {sR}, 2")
e(f"s_lshl{3 if P['xmap'] else 2}_add_u32 {sH}, {sX}, s45")
e(f"s_and_b32 {sJ}, {sR}, 3")
e(f"s_and_b32 s58, {sW}, 3")
e(f"s_lshl2_add_u32 s45, {sJ}, s58")
e("s_lshl_b32 s45, s45, 18")
e(f"s_lshl_b32 s57, {sH}, 8")
e("s_add_u32 s57, s57, s45")
e("s_lshl_b32 s58, s58, 13")
e("v_lshlrev_b32 v4, 1, v3")
e("v_xor_b32 v4, v2, v4")
e("v_lshlrev_b32 v4, 4, v4")
e("v_lshl_add_u32 v10, v3, 13, v4")
if P["x_wc"]:
    e("v_and_b32 v10, 63, v0")
    e("v_lshlrev_b32 v10, 4, v10")
    e(f"s_lshl_b32 s57, {sH}, 2")
    e(f"s_add_u32 s57, s57, {sJ}")
    e("s_lshl_b32 s57, s57, 15")
    e("s_add_u32 s57, s57, s58")
e("v_lshlrev_b32 v5, 25, v0")
e("v_lshrrev_b32 v5, 21, v5")
e("s_lshl_b32 s18, 1, 22")
e("s_lshl_b32 s19, 1, 17")
e("s_mov_b32 m0, s58")
e("s_movk_i32 s48, 0x80")
e(f"s_lshl_b32 s49, 1, {10 if P['x_wc'] else 15}")
e("s_mov_b32 s47, 3")
e(f"s_cmp_gt_u32 {sW}, 3")
e("s_waitcnt lgkmcnt(0)")
e("global_load_dwordx4 v[20:23], v5, s[8:9]")
e("s_cbranch_scc1 L_w_hi")
if P["x_s2"]: e("s_branch L_w_hi")
lab("L_wq")
dma(10, SA, "s57", "nt")
e("s_addk_i32 m0, 0x400")
e("s_add_u32 s57, s57, s49")
dma(10, SA, "s57", "nt")
e("s_addk_i32 m0, 0x400")
e("s_add_u32 s57, s57, s49")
e("v_xor_b32 v10, s48, v10")
e("s_sub_u32 s47, s47, 1")
e("s_cbranch_scc0 L_wq")
e(f"s_sub_u32 s57, s57, {0x2000 if P['x_wc'] else 0x40000}")
lab("L_w_hi")
stamp(1)
c("================= weight CU: head h = 4x + (r>>2), quarter j = r&3 =================")
if P["xmap"]:
    e(f"s_lshr_b32 {sX}, {sH}, 2")
    e(f"s_and_b32 {sR}, {sR}, 15")
e("s_load_dwordx2 s[12:13], s[0:1], 88")
e("s_load_dwordx2 s[20:21], s[0:1], 24")
e("s_load_dwordx2 s[24:25], s[0:1], 32")
e("s_load_dwordx2 s[32:33], s[0:1], 56")
e("s_load_dwordx2 s[28:29], s[0:1], 40")
e("s_load_dwordx2 s[36:37], s[0:1], 64")
if P["w_ckv"]: e("s_load_dwordx2 s[40:41], s[0:1], 8")
srd(12, WS_BYTES); srd(20, 4194304)
e("v_and_b32 v1, 63, v0")
e("v_mov_b32 v7, 0")
e("v_lshlrev_b32 v8, 4, v1")
e("v_xor_b32 v4, v2, v3")
e("v_lshlrev_b32 v4, 4, v4")
e("v_lshl_add_u32 v12, v3, 13, v4")
e("v_xor_b32 v13, 0x40, v12")
e("v_xor_b32 v14, 0x80, v12")
e("v_xor_b32 v15, 0xc0, v12")
e(f"s_lshl_b32 s59, {sX}, 4")
e(f"s_add_u32 s59, s59, {sR}")
e("v_lshlrev_b32 v9, 15, v3")
e("v_lshl_add_u32 v9, v2, 4, v9")
e("s_lshl_b32 s60, s59, 8")
e(f"s_add_u32 s60, s60, {QA}")
e("s_lshl_b32 s62, s59, 10")
e(f"s_add_u32 s45, s62, {QPA}")
e("v_lshlrev_b32 v28, 7, v1")
e("v_mov_b32 v24, -1")
e("v_mov_b32 v25, -1")
e("v_mov_b32 v26, -1")
e("v_mov_b32 v27, -1")
e("s_waitcnt lgkmcnt(0)")
e(f"s_load_dword {sTAG}, s[12:13], 0")
e(f"s_cmp_lg_u32 {sW}, 0")
e("s_cbranch_scc1 L_w_norst")
e("s_mov_b64 exec, 0xff")
e(f"buffer_load_dword v29, v28, {SWS}, s45 offen sc1")
e("s_mov_b32 exec_lo, -1")
e(f"buffer_store_dwordx4 v[24:27], v9, {SWS}, s60 offen sc1")
e("s_mov_b64 exec, -1")
lab("L_w_norst")
e(f"s_cmp_lt_u32 {sW}, 4")
e("s_cbranch_scc1 L_w_lo")
for i in range(0 if P["x_s2"] else 8):
    e(f"s_add_u32 m0, s58, {R1 + i*1024}")
    e(f"s_add_u32 s45, s57, {i*(1024 if P['x_wc'] else 32768)}")
    dma(10 if P["x_wc"] else 12 + (i & 3), SB, "s45", "nt")
lab("L_w_lo")
srd(24, 4194304); srd(32, 1409024); srd(28, 4194304); srd(36, 1409024)
def consts():
    e(f"s_mov_b32 {sPK0}, 0x07060501")
    e(f"s_mov_b32 {sPK1}, 0x07060502")
    e(f"s_mov_b32 {sPK2}, 0x07060503")
    e(f"s_mov_b32 {sUP}, 0x0c04000c")
    e("s_mov_b32 s54, 0x00030003")
    e("s_mov_b32 s55, 0x00030003")
consts()
if P["w_ckv"]:
    srd(40, 8388608)
    e(f"s_lshl_b32 s99, {sX}, 20")
    e(f"s_lshr_b32 s45, {sR}, 1")
    e("s_lshl_b32 s45, s45, 17")
    e("s_add_u32 s99, s99, s45")
    e(f"s_and_b32 s45, {sR}, 1")
    e("s_lshl_b32 s45, s45, 15")
    e("s_add_u32 s99, s99, s45")
    e("s_add_u32 s99, s99, s58")
    e("s_add_u32 s99, s99, 0x10000")
def ckv_pf():
    e(f"buffer_load_dword v29, v28, {SO}, s99 offen {'nt' if P['nt_ckv'] else ''}")
c("LDS / hand-off addresses")
e("v_lshrrev_b32 v4, 2, v2")
e("v_and_b32 v5, 3, v2")
e("v_and_b32 v30, 1, v3")
e("v_lshl_or_b32 v30, v30, 2, v4")
e(f"v_xor_b32 v30, {sW}, v30")
e("v_lshlrev_b32 v30, 5, v30")
e("v_lshl_add_u32 v30, v5, 3, v30")
e("v_lshl_add_u32 v31, v3, 3, v4")
e("v_lshl_add_u32 v16, v31, 8, v30")
e("v_and_b32 v32, 1, v2")
e(f"v_mul_u32_u24 v17, {XNS}, v32")
e(f"s_lshl_b32 s45, {sJ}, 8")
e("v_lshl_add_u32 v18, v3, 4, v17")
e("v_add_u32 v18, s45, v18")
e(f"v_mul_u32_u24 v19, {QLS}, v32")
e("v_lshl_add_u32 v33, v3, 4, v19")
e("v_lshlrev_b32 v34, 5, v3")
e("v_lshl_add_u32 v34, v2, 4, v34")
e("v_lshrrev_b32 v36, 1, v1")
e("v_lshl_add_u32 v37, v36, 3, v19")
e("v_xor_b32 v40, v2, v3")
e("v_lshlrev_b32 v40, 4, v40")
e("v_lshl_add_u32 v40, v2, 8, v40")
e(f"s_lshl_b32 s45, {sW}, 12")
e("v_add_u32 v40, s45, v40")
e("v_xor_b32 v41, 0x40, v40")
e("v_xor_b32 v42, 0x80, v40")
e("v_xor_b32 v43, 0xc0, v40")
e(f"s_lshl_b32 s45, {sW}, 5")
e("v_lshl_add_u32 v39, v3, 3, s45")
e("v_lshl_add_u32 v44, v2, 8, v39")
e("v_add_u32 v45, v19, v39")
e(f"s_lshl_b32 s45, {sW}, 7")
e("s_add_u32 s62, s62, s45")
e(f"s_lshl_b32 s61, {sH}, 12")
e(f"s_add_u32 s63, s61, {QPB}")
e(f"s_add_u32 s61, s61, {QPA}")
e(f"s_add_u32 s48, s62, {QPA}")
e(f"s_add_u32 s49, s62, {QPB}")
e(f"s_cmp_gt_u32 {sW}, 3")
e("s_cbranch_scc1 L_w_lnend")
c("wave 1 clears the weight table and the retry flag")
e(f"s_cmp_lg_u32 {sW}, 1")
e("s_cbranch_scc1 L_w_noinit")
e("v_lshlrev_b32 v46, 2, v1")
e(f"ds_write_b32 v46, v7 offset:{WT}")
e(f"ds_write_b32 v46, v7 offset:{WT+256}")
lab("L_w_noinit")
e(f"s_cmp_lt_u32 {sW}, 2")
e("s_cbranch_scc1 L_w_noln")
e("s_waitcnt vmcnt(8)")
c("layer norm of row w&1 (bf16 rounding after every step, as the reference does)")
for k in range(4):
    e(f"v_lshlrev_b32 v{48+2*k}, 16, v{20+k}")
    e(f"v_and_b32 v{49+2*k}, 0xffff0000, v{20+k}")
e("v_add_f32 v56, v48, v49")
e("v_add_f32 v57, v50, v51")
e("v_add_f32 v58, v52, v53")
e("v_add_f32 v59, v54, v55")
e("v_add_f32 v56, v56, v57")
e("v_add_f32 v58, v58, v59")
e("v_add_f32 v56, v56, v58")
row_allreduce16("add", 56)
swap_reduce("add", 56, 57, 16)
swap_reduce("add", 56, 57, 32)
e("v_mul_f32 v56, 0x3b000000, v56")
for k in range(8):
    e(f"v_sub_f32 v{60+k}, v{48+k}, v56")
e("v_mul_f32 v57, v60, v60")
for k in range(1, 8):
    e(f"v_fmac_f32 v57, v{60+k}, v{60+k}")
row_allreduce16("add", 57)
swap_reduce("add", 57, 58, 16)
swap_reduce("add", 57, 58, 32)
e("v_mul_f32 v57, 0x3b000000, v57")
round_bf16(56)
round_bf16(57)
e("v_add_f32 v57, 0x3727c5ac, v57")
round_bf16(57)
e("v_sqrt_f32 v57, v57")
e("s_nop 0")
round_bf16(57)
e("v_rcp_f32 v57, v57")
for k in range(8):
    e(f"v_sub_f32 v{60+k}, v{48+k}, v56")
for k in range(4):
    e(f"v_cvt_pk_bf16_f32 v{48+k}, v{60+2*k}, v{61+2*k}")
for k in range(4):
    e(f"v_lshlrev_b32 v{60+2*k}, 16, v{48+k}")
    e(f"v_and_b32 v{61+2*k}, 0xffff0000, v{48+k}")
for k in range(8):
    e(f"v_mul_f32 v{60+k}, v{60+k}, v57")
for k in range(4):
    e(f"v_cvt_pk_bf16_f32 v{48+k}, v{60+2*k}, v{61+2*k}")
e(f"s_and_b32 s45, {sW}, 1")
e(f"s_mul_i32 s45, s45, {XNS}")
e("v_add_u32 v56, s45, v8")
e(f"ds_write_b128 v56, v[48:51] offset:{XN}")
lab("L_w_noln")
e(f"s_cmp_eq_u32 {sW}, 0")
e("s_cbranch_scc1 L_w_w0")
e("s_waitcnt vmcnt(0)")
lab("L_w_w0")
e("s_waitcnt vmcnt(2)")
lab("L_w_lnend")
e("s_waitcnt lgkmcnt(0)")
e(f"s_add_u32 {sTAG}, {sTAG}, 1")
stamp(2)
if P["x_s2"]:
    e("s_waitcnt vmcnt(0)")
    e("s_barrier")
    e("s_branch L_w_noqa")
if P["x_exit"] == 1:
    e("s_waitcnt vmcnt(0)")
    stamp(3)
    e("s_branch L_w_fin")
e("s_barrier")
c("P1a: partial q over my m quarter, d tile w")
for s in range(4):
    rd128(56 + 4*s, 18, XN + s*64)
    tr(72 + 4*s, 16, R0 + s*8192)
    tr(74 + 4*s, 16, R0 + s*8192 + 1024)
for s in range(4):
    e(f"s_waitcnt lgkmcnt({9 - 3*s})")
    mfma(88, 72 + 4*s, 56 + 4*s, None if s == 0 else 88)
e("s_nop 7")
pack_granule(92, 88)
e(f"s_mov_b64 exec, {sM2}")
if not P["x_noloc"]: e(f"buffer_store_dwordx4 v[92:95], v34, {SWS}, s48 offen")
e(f"buffer_store_dwordx4 v[92:95], v34, {SWS}, s49 offen sc1")
stamp(3)
e(f"s_cmp_gt_u32 {sW}, 3")
e("s_cbranch_scc1 L_w_h0")
if P["w_ckv"] in (2, 3):
    e("s_mov_b64 exec, -1")
    if P["w_ckv"] == 3:
        e(f"s_cmp_lt_u32 {sW}, 2")
        e("s_cbranch_scc1 L_w_ck2")
    ckv_pf()
    lab("L_w_ck2")
e(f"s_cmp_lg_u32 {sW}, 0")
e("s_cbranch_scc1 L_w_h0done")
e("s_lshl_b32 s45, s59, 7")
e(f"s_add_u32 s45, s45, {FLG}")
e(f"v_mov_b32 v6, {sTAG}")
e("s_mov_b64 exec, 1")
e(f"s_waitcnt vmcnt({(1 if P['x_noloc'] else 2) + (P['w_ckv'] == 2)})")
e(f"buffer_store_dword v6, v7, {SWS}, s45 offen sc1")
e("s_branch L_w_h0done")
lab("L_w_h0")
e("s_mov_b64 exec, -1")
e(f"s_cmp_eq_u32 {sW}, 7")
e("s_cbranch_scc1 L_w_h0p")
e(f"s_waitcnt vmcnt({1 if P['x_noloc'] else 2})")
e("s_branch L_w_h0done")
lab("L_w_h0p")
e(f"s_waitcnt vmcnt({(1 if P['x_noloc'] else 2) + P['h0_k']})")
def ckv_pf4():
    e("s_sub_u32 s99, s99, s58")
    for k in range(4):
        ckv_pf()
        if k < 3: e("s_add_u32 s99, s99, 8192")
    return 4
dual_poll4("h0", 96, [8, 8, 8, 8], "s61", "s63", offs=(0, 1024, 2048, 3072), first=ckv_pf4 if P["w_ckv"] == 4 else None)
stamp(4)
sum4(96)
e("v_cvt_pk_bf16_f32 v96, v96, v97")
e("v_cvt_pk_bf16_f32 v97, v98, v99")
e(f"ds_write_b64 v37, v[96:97] offset:{QL}")
lab("L_w_h0done")
e("s_mov_b64 exec, -1")
e("s_waitcnt lgkmcnt(0)")
e("s_barrier")
c("P1b: absorbed query for my c quarter, c tile w")
for s in range(4):
    rd128(56 + 4*s, 33, QL + s*64)
    rd128(72 + 4*s, 40 + s, R1)
if P["w_ckv"] in (1, 3):
    e(f"s_cmp_lt_u32 {sW}, 4")
    e("s_cbranch_scc1 L_w_nockv")
    if P["w_ckv"] == 3:
        e(f"s_cmp_gt_u32 {sW}, 5")
        e("s_cbranch_scc1 L_w_nockv")
    ckv_pf()
    lab("L_w_nockv")
for s in range(4):
    e(f"s_waitcnt lgkmcnt({6 - 2*s})")
    mfma(88, 72 + 4*s, 56 + 4*s, None if s == 0 else 88)
e("s_nop 7")
e("v_cvt_pk_bf16_f32 v92, v88, v89")
e("v_cvt_pk_bf16_f32 v93, v90, v91")
e(f"s_mov_b64 exec, {sM2}")
e(f"ds_write_b64 v44, v[92:93] offset:{QST}")
e("s_mov_b64 exec, -1")
e("s_waitcnt lgkmcnt(0)")
e("s_barrier")
e(f"s_cmp_lg_u32 {sW}, 0")
e("s_cbranch_scc1 L_w_noqa")
e("s_mov_b32 exec_hi, 0")
rd128(92, 8, QST)
e("s_waitcnt lgkmcnt(0)")
e(f"buffer_store_dwordx4 v[92:95], v9, {SWS}, s60 offen sc1")
e("s_mov_b64 exec, -1")
lab("L_w_noqa")
stamp(5)
if P["x_exit"] == 2: e("s_branch L_w_fin")
c("second stream: waves 0-3 w_uv, waves 4-7 w1")
def wthr():
    if P["w_win"] < 63: e(f"s_waitcnt vmcnt({P['w_win']})")
def t0x(dst):
    e(f"s_mul_i32 {dst}, {sX}, 11")
    e(f"s_sub_u32 s45, {sX}, 6")
    e("s_max_i32 s45, s45, 0")
    e(f"s_sub_u32 {dst}, {dst}, s45")
e("s_lshl_b32 s98, s59, 11")
e(f"s_add_u32 s98, s98, {HPA}")
if P["s2_gate"]:
    c("pacing only: let the c_kv stream of this group finish first")
    e(f"s_cmp_lg_u32 {sW}, 1")
    e("s_cbranch_scc1 L_w_gate")
    e(f"s_lshl_b32 s45, {sX}, 7")
    e(f"s_add_u32 s45, s45, {CKF}")
    e("v_lshlrev_b32 v46, 2, v2")
    e(f"s_mov_b32 {sCNT}, 0")
    lab("L_w_gl")
    e(f"buffer_load_dword v47, v46, {SWS}, s45 offen sc1")
    e(f"s_add_u32 {sCNT}, {sCNT}, 1")
    e("s_waitcnt vmcnt(0)")
    e(f"v_cmp_ne_u32 vcc, {sTAG}, v47")
    e("s_cbranch_vccz L_w_gate")
    e(f"s_cmp_lt_u32 {sCNT}, {P['s2_gate']}")
    e("s_cbranch_scc1 L_w_gl")
    lab("L_w_gate")
    e("s_barrier")
if P["w_nat"]:
    c("c_kv first: the second weight stream starts when my share of it is in L2")
    e("s_waitcnt vmcnt(0)")
    e("s_barrier")
if P["w2_delay"]: e(f"s_sleep {P['w2_delay']}")
e(f"s_cmp_gt_u32 {sW}, 3")
e("s_cbranch_scc1 L_w_s2hi")
e("v_xor_b32 v11, 0x80, v10")
for i in range(0 if P["x_s2"] & 2 else 8):
    e(f"s_add_u32 m0, s58, {R0 + i*1024}")
    e(f"s_add_u32 s45, s57, {i*32768}")
    dma(10 + ((i >> 1) & 1), SC, "s45", "nt")
    wthr()
e("s_branch L_w_s2done")
lab("L_w_s2hi")
e(f"s_cmp_lg_u32 {sW}, 6")
e("s_cbranch_scc1 L_w_nopre")
e("s_lshl_b32 s45, s59, 10")
e(f"s_add_u32 s45, s45, {CPA}")
e("s_mov_b64 exec, 0xff")
e(f"buffer_load_dword v29, v28, {SWS}, s45 offen sc1")
e("s_mov_b64 exec, 0xfff")
e(f"buffer_load_dword v29, v28, {SWS}, s98 offen sc1")
e("s_mov_b64 exec, -1")
if P["w_slow"]:
    e("v_and_b32 v46, 31, v1")
    e("v_lshlrev_b32 v46, 13, v46")
    e("v_lshrrev_b32 v47, 5, v1")
    e("v_lshl_add_u32 v46, v47, 7, v46")
    e(f"s_lshl_b32 s45, {sR}, 18")
    e(f"s_lshl_b32 s47, {sX}, 10")
    e("s_add_u32 s45, s45, s47")
    e(f"buffer_load_dword v29, v46, {SC}, s45 offen offset:256")
lab("L_w_nopre")
t0x("s46")
e(f"s_mul_i32 s45, {sR}, {32*2752}")
e("s_lshl_b32 s48, s46, 5")
e("s_add_u32 s45, s45, s48")
e("s_lshr_b32 s48, s58, 7")
e("v_add_u32 v46, s48, v1")
e("s_movk_i32 s47, 2400")
e("s_lshr_b32 s48, s58, 3")
for i in range(0 if P["x_s2"] & 4 else 3):
    if i == 2:
        e(f"s_cmp_eq_u32 {sW}, 7")
        e("s_cbranch_scc1 L_w_w1done")
    e("v_mul_u32_u24 v47, 2979, v46")
    e("v_lshrrev_b32 v47, 16, v47")
    e("v_lshlrev_b32 v48, 4, v46")
    e("v_mad_u32_u24 v47, v47, s47, v48")
    e(f"s_add_u32 m0, s48, {W1L + i*4096}")
    e("v_add_u32 v46, 0x100, v46")
    dma(47, SE, "s45", "nt")
    wthr()
lab("L_w_w1done")
def wo_pf(done):
    c("pull a contiguous 1/16 of this XCD group's w_o / w2 rows into L2 (one lane per 128-B line)")
    e(f"s_lshl_b32 s45, {sX}, 19")
    e(f"s_lshl_b32 s48, {sR}, 15")
    e("s_add_u32 s45, s45, s48")
    e("s_add_u32 s45, s45, s58")
    if not P["x_s2"] & 8: e(f"buffer_load_dword v29, v28, {SD}, s45 offen {'nt' if P['pf_nt'] else ''}")
    e(f"s_cmp_gt_u32 {sW}, 5")
    e(f"s_cbranch_scc1 {done}")
    e("s_lshl_b32 s45, s46, 14")
    e(f"s_mul_i32 s48, {sR}, 12288")
    e("s_add_u32 s45, s45, s48")
    e("s_add_u32 s45, s45, s58")
    e(f"s_cmp_eq_u32 {sW}, 5")
    e("s_cselect_b32 exec_hi, 0, -1")
    if not P["x_s2"] & 16: e(f"buffer_load_dword v29, v28, {SF}, s45 offen {'nt' if P['pf_nt'] else ''}")
    e("s_mov_b64 exec, -1")
if P["w_pf"] == 1: wo_pf("L_w_s2done")
lab("L_w_s2done")
e(f"v_add_u32 v53, {OIN}, v16")
e("v_lshrrev_b32 v51, 3, v0")
e("v_and_b32 v50, 7, v0")
e("v_lshlrev_b32 v50, 4, v50")
e("v_lshl_add_u32 v50, v51, 8, v50")
e(f"v_add_u32 v50, {OIN}, v50")
e("v_lshlrev_b32 v51, 2, v51")
e(f"v_mul_u32_u24 v54, {WTS}, v32")
e("v_lshl_add_u32 v54, v3, 4, v54")
e("v_lshlrev_b32 v55, 1, v3")
e("v_xor_b32 v55, v2, v55")
e(f"s_and_b32 s45, {sW}, 1")
e("s_lshl_b32 s45, s45, 3")
e("v_xor_b32 v55, s45, v55")
e("v_lshlrev_b32 v55, 4, v55")
e("v_lshl_add_u32 v55, v3, 8, v55")
e("s_lshl_b32 s101, s59, 14")
e(f"s_lshl_b32 s45, {sW}, 11")
e("s_add_u32 s101, s101, s45")
e(f"s_add_u32 s101, s101, {OP}")
e(f"s_add_u32 s57, s45, {OIN}")
c("FFN first layer: partial sums over my 32 rows of w1, tiles w and w+8")
e("v_lshl_add_u32 v64, v3, 2, v4")
e("v_mul_u32_u24 v64, 352, v64")
e("v_lshl_add_u32 v64, v5, 3, v64")
e(f"s_lshl_b32 s48, {sW}, 5")
e(f"s_add_u32 s48, s48, {W1L}")
e("v_add_u32 v64, s48, v64")
e(f"s_lshl_b32 s48, {sR}, 6")
e("v_lshl_add_u32 v65, v3, 3, v17")
e("v_add_u32 v65, s48, v65")
e(f"s_lshl_b32 s48, {sW}, 7")
e("s_add_u32 s48, s48, s98")
e(f"s_add_u32 s49, s48, {HPB-HPA}")
if P["ffn_early"]:
    e(f"s_cmp_lt_u32 {sW}, 4")
    e("s_cbranch_scc1 L_w_w1in")
e("s_waitcnt vmcnt(0)")
if not P["ffn_early"]: stamp(6)
lab("L_w_w1in")
if P["x_s2"] or P["x_exit"] == 3: e("s_branch L_w_fin")
e("s_barrier")
e(f"ds_read_b64 v[56:57], v65 offset:{XN}")
e(f"ds_read_b64 v[58:59], v65 offset:{XN+32}")
tr(72, 64, 0); tr(74, 64, 5632)
tr(76, 64, 256); tr(78, 64, 5632 + 256)
e("s_waitcnt lgkmcnt(2)")
mfma(88, 72, 56, None)
e("s_waitcnt lgkmcnt(0)")
mfma(84, 76, 56, None)
e("s_nop 6")
pack_granule(92, 88)
e(f"s_mov_b64 exec, {sM2}")
if not P["x_noloc"]: e(f"buffer_store_dwordx4 v[92:95], v34, {SWS}, s48 offen")
e(f"buffer_store_dwordx4 v[92:95], v34, {SWS}, s49 offen sc1")
e(f"s_cmp_gt_u32 {sW}, 2")
e("s_cbranch_scc1 L_w_ffn1done")
pack_granule(80, 84)
if not P["x_noloc"]: e(f"buffer_store_dwordx4 v[80:83], v34, {SWS}, s48 offen offset:1024")
e(f"buffer_store_dwordx4 v[80:83], v34, {SWS}, s49 offen offset:1024 sc1")
lab("L_w_ffn1done")
e("s_mov_b64 exec, -1")
if P["w_pf"] == 3:
    e(f"s_cmp_lt_u32 {sW}, 4")
    e("s_cbranch_scc1 L_w_pfdone")
    wo_pf("L_w_pfdone")
    lab("L_w_pfdone")
if P["o_pre"]:
    e(f"s_cmp_gt_u32 {sW}, 1")
    e("s_cbranch_scc1 L_w_nopre2")
    e("s_lshl_b32 s45, s59, 14")
    e(f"s_lshl_b32 s46, {sW}, 13")
    e("s_add_u32 s45, s45, s46")
    e(f"s_add_u32 s45, s45, {OP}")
    e(f"buffer_load_dword v29, v28, {SWS}, s45 offen sc1")
    lab("L_w_nopre2")
if P["ffn_early"]:
    e(f"s_cmp_eq_u32 {sW}, 3")
    e("s_cbranch_scc1 L_w_uv2")
    e("s_waitcnt vmcnt(4)")
    e("s_branch L_w_uvin")
    lab("L_w_uv2")
    e("s_waitcnt vmcnt(2)")
    lab("L_w_uvin")
    stamp(6)
    e("s_barrier")
c("weight fragments into registers")
for s in range(4):
    tr(96 + 4*s, 16, R0 + s*8192)
    tr(98 + 4*s, 16, R0 + s*8192 + 1024)
if P["h2w"]:
    ML = XN + 5760
    e(f"s_lshr_b32 s45, {sH}, 4")
    e("s_lshl_b32 s45, s45, 16")
    if P["st_x"]:
        e(f"s_and_b32 s46, {sX}, 3")
        e("s_lshl_b32 s46, s46, 8")
        e("s_add_u32 s48, s45, s46")
        e(f"s_lshl_b32 s46, {sJ}, 6")
        e("s_add_u32 s48, s48, s46")
        e(f"s_and_b32 s46, {sH}, 3")
        e("s_lshl_b32 s46, s46, 4")
        e("s_add_u32 s48, s48, s46")
    else:
        e(f"s_and_b32 s46, {sH}, 15")
        e("s_lshl_b32 s46, s46, 4")
        e("s_add_u32 s48, s45, s46")
        e(f"s_lshl_b32 s46, {sJ}, 8")
        e("s_add_u32 s48, s48, s46")
    e(f"s_add_u32 s99, s48, {ST}")
    e("v_lshlrev_b32 v62, 8, v51")
    if P["o_swz"]:
        e(f"s_lshl_b32 s45, {sJ}, 1")
        e(f"s_xor_b32 s45, s45, {sH}")
        e("s_and_b32 s45, s45, 7")
        e("s_lshl_b32 s45, s45, 10")
        e("v_xor_b32 v62, s45, v62")
    e("v_lshlrev_b32 v63, 1, v51")
    e("v_mov_b32 v68, 1")
    e("s_mov_b32 s58, 1")
    e("s_mov_b32 m0, s57")
    c("statistics of the 8 key splits (one XCD group) whose rows this wave fetches")
    stamp(7)
    if P["hint"]:
        c("a line that is read before it is written slows the write down: back off until the producers are about done")
        e(f"s_lshr_b32 s46, {sH}, 4")
        e("s_lshl_b32 s46, s46, 13")
        e(f"s_add_u32 s46, s46, {HINT}")
        e("v_lshlrev_b32 v60, 5, v51")
        e(f"s_mov_b32 {sCNT}, 0")
        lab("L_hint")
        e(f"buffer_load_dword v61, v60, {SWS}, s46 offen sc1")
        e(f"s_add_u32 {sCNT}, {sCNT}, 1")
        e("s_waitcnt vmcnt(0)")
        e(f"v_cmp_ne_u32 vcc, {sTAG}, v61")
        e("s_cbranch_vccz L_hint_ok")
        e(f"s_cmp_lt_u32 {sCNT}, {TMO}")
        e("s_cbranch_scc1 L_hint")
        lab("L_hint_ok")
        stamp(12)
        e(f"s_cmp_eq_u32 {sCNT}, 1")
        e("s_cbranch_scc1 L_hint_go")
        e(f"s_sleep {P['hint_d']}")
        lab("L_hint_go")
    if P["hint"] and P["hint_spec"]:
        e(f"buffer_load_dwordx4 v[56:59], v62, {SWS}, s99 offen sc1")
        dma(55, SWS, "s101", "sc1")
        dma(55, SWS, "s101", "sc1", 1024)
        e("s_waitcnt vmcnt(2)")
        e(f"v_cmp_ne_u32 vcc, {sTAG}, v59")
        e("s_cbranch_vccz L_st_in")
    dual_poll("st", 56, 62, "s99", "s99", bo=P["bo_st"])
    dma(55, SWS, "s101", "sc1")
    dma(55, SWS, "s101", "sc1", 1024)
    lab("L_st_in")
    stamp(8)
    e(f"ds_write_b64 v63, v[56:57] offset:{ML}")
    e("s_mov_b64 exec, 1")
    e(f"ds_add_rtn_u32 v69, v7, v68 offset:{FLAGL + 4}")
    e("s_mov_b64 exec, -1")
    e("v_lshlrev_b32 v63, 3, v1")
    e(f"ds_read_b64 v[64:65], v63 offset:{ML}")
    e("s_waitcnt lgkmcnt(0)")
    e("v_readfirstlane_b32 s45, v69")
    e("s_nop 1")
    e("s_cmp_lg_u32 s45, 7")
    e("s_cbranch_scc1 L_w_owait")
    c("the wave that is last: split weights exp2(m - M) / L per batch (lanes 0-31 / 32-63)")
    e("v_mov_b32 v60, v64")
    row_allreduce16("max", 60)
    swap_reduce("max", 60, 61, 16)
    e("v_sub_f32 v60, v64, v60")
    e("v_exp_f32 v60, v60")
    e("s_nop 0")
    e("v_mul_f32 v61, v60, v65")
    row_allreduce16("add", 61)
    swap_reduce("add", 61, 63, 16)
    e("v_rcp_f32 v61, v61")
    e("v_lshrrev_b32 v63, 5, v1")
    e(f"v_mul_u32_u24 v63, {WTS}, v63")
    e("v_mul_f32 v60, v60, v61")
    e("v_lshl_add_u32 v63, v1, 1, v63")
    e("v_cvt_pk_bf16_f32 v60, v60, v60")
    e(f"ds_write_b16 v63, v60 offset:{WT}")
    e("s_branch L_w_owait")
    lab("L_w_oretry")
    e("s_add_u32 s58, s58, 1")
    dma(55, SWS, "s101", "sc1")
    dma(55, SWS, "s101", "sc1", 1024)
    lab("L_w_owait")
    e("s_waitcnt vmcnt(0) lgkmcnt(0)")
    stamp(9)
    e("s_barrier")
    c("combine the 2x32 key splits for c tile w; check my rows against their checksums")
    for kk in range(2):
        rd128(60 + 4*kk, 54, WT + kk*64)
        tr(72 + 4*kk, 53, kk*8192)
        tr(74 + 4*kk, 53, kk*8192 + 1024)
    rd128(80, 50, 0)
    rd128(84, 50, 128)
    e("s_waitcnt lgkmcnt(5)")
    mfma(88, 72, 60, None)
    e("s_waitcnt lgkmcnt(2)")
    mfma(88, 76, 64, 88)
    e("v_mov_b32 v68, s58")
    e("s_waitcnt lgkmcnt(0)")
    e("v_add3_u32 v80, v80, v81, v82")
    e("v_add3_u32 v84, v84, v85, v86")
    e("v_add3_u32 v80, v80, v83, v87")
    e("v_add_u32 v80, v80, v84")
    e("s_nop 1")
    e("v_add_u32_dpp v80, v80, v80 quad_perm:[1,0,3,2] row_mask:0xf bank_mask:0xf")
    e("v_cvt_pk_bf16_f32 v92, v88, v89")
    e("v_cvt_pk_bf16_f32 v93, v90, v91")
    e("v_add_u32_dpp v80, v80, v80 quad_perm:[2,3,0,1] row_mask:0xf bank_mask:0xf")
    e(f"s_mov_b64 exec, {sM2}")
    e(f"ds_write_b64 v45, v[92:93] offset:{QL}")
    e("s_mov_b64 exec, -1")
    e("v_add_u32_dpp v80, v80, v80 row_half_mirror row_mask:0xf bank_mask:0xf")
    e("s_nop 0")
    e("v_cmp_ne_u32 vcc, v80, v58")
    e("s_and_b64 exec, exec, vcc")
    e("s_cbranch_execz L_w_onan")
    e(f"ds_max_u32 v7, v68 offset:{FLAGL}")
else:
    e(f"s_cmp_lg_u32 {sW}, 7")
    e("s_cbranch_scc1 L_w_nopoll")
    c("wave 7: wait for the 64 softmax statistics of my head")
    e(f"s_lshr_b32 s45, {sH}, 4")
    e("s_lshl_b32 s45, s45, 16")
    e(f"s_and_b32 s46, {sH}, 15")
    e("s_lshl_b32 s46, s46, 4")
    e("s_add_u32 s48, s45, s46")
    e(f"s_lshl_b32 s46, {sJ}, 8")
    e("s_add_u32 s48, s48, s46")
    e(f"s_add_u32 s48, s48, {ST}")
    e("v_lshlrev_b32 v62, 10, v1")
    stamp(7)
    dual_poll("st", 56, 62, "s48", "s48")
    stamp(8)
    def split_weights():
        c("split weights: exp2(m - M) / L per batch (lanes 0-31 / 32-63)")
        e("v_mov_b32 v60, v56")
        row_allreduce16("max", 60)
        swap_reduce("max", 60, 61, 16)
        e("v_sub_f32 v60, v56, v60")
        e("v_exp_f32 v60, v60")
        e("s_nop 0")
        e("v_mul_f32 v61, v60, v57")
        row_allreduce16("add", 61)
        swap_reduce("add", 61, 63, 16)
        e("v_rcp_f32 v61, v61")
        e("v_lshrrev_b32 v63, 5, v1")
        e(f"v_mul_u32_u24 v63, {WTS}, v63")
        e("v_mul_f32 v60, v60, v61")
        e("v_lshl_add_u32 v63, v1, 1, v63")
        e("v_cvt_pk_bf16_f32 v60, v60, v60")
        e(f"ds_write_b16 v63, v60 offset:{WT}")
    lab("L_w_nopoll")
    e("s_mov_b32 s58, 0")
    e("s_waitcnt lgkmcnt(0)")
    e("s_barrier")
    lab("L_w_oretry")
    e("s_add_u32 s58, s58, 1")
    e("s_mov_b32 m0, s57")
    e("s_nop 0")
    dma(55, SWS, "s101", "sc1")
    dma(55, SWS, "s101", "sc1", 1024)
    e("s_cmp_gt_u32 s58, 1")
    e("s_cbranch_scc1 L_w_owait")
    e(f"s_cmp_lg_u32 {sW}, 7")
    e("s_cbranch_scc1 L_w_owait")
    e("v_lshlrev_b32 v63, 2, v1")
    e(f"ds_write_b32 v63, v58 offset:{CKT}")
    split_weights()
    lab("L_w_owait")
    e("s_waitcnt vmcnt(0) lgkmcnt(0)")
    stamp(9)
    e("s_barrier")
    c("combine the 2x32 key splits for c tile w; check the rows against their checksums")
    for kk in range(2):
        rd128(60 + 4*kk, 54, WT + kk*64)
        tr(72 + 4*kk, 53, kk*8192)
        tr(74 + 4*kk, 53, kk*8192 + 1024)
    rd128(80, 50, 0)
    rd128(84, 50, 128)
    e(f"ds_read_b32 v69, v51 offset:{CKT}")
    e("s_waitcnt lgkmcnt(6)")
    mfma(88, 72, 60, None)
    e("s_waitcnt lgkmcnt(3)")
    mfma(88, 76, 64, 88)
    e("v_mov_b32 v68, s58")
    e("s_waitcnt lgkmcnt(1)")
    e("v_add3_u32 v80, v80, v81, v82")
    e("v_add3_u32 v84, v84, v85, v86")
    e("v_add3_u32 v80, v80, v83, v87")
    e("v_add_u32 v80, v80, v84")
    e("s_nop 1")
    e("v_add_u32_dpp v80, v80, v80 quad_perm:[1,0,3,2] row_mask:0xf bank_mask:0xf")
    e("v_cvt_pk_bf16_f32 v92, v88, v89")
    e("v_cvt_pk_bf16_f32 v93, v90, v91")
    e("v_add_u32_dpp v80, v80, v80 quad_perm:[2,3,0,1] row_mask:0xf bank_mask:0xf")
    e(f"s_mov_b64 exec, {sM2}")
    e(f"ds_write_b64 v45, v[92:93] offset:{QL}")
    e("s_mov_b64 exec, -1")
    e("v_add_u32_dpp v80, v80, v80 row_half_mirror row_mask:0xf bank_mask:0xf")
    e("s_waitcnt lgkmcnt(1)")
    e("v_cmp_ne_u32 vcc, v80, v69")
    e("s_and_b64 exec, exec, vcc")
    e("s_cbranch_execz L_w_onan")
    e(f"ds_max_u32 v7, v68 offset:{FLAGL}")
lab("L_w_onan")
e("s_mov_b64 exec, -1")
e("s_waitcnt lgkmcnt(0)")
e("s_barrier")
e(f"ds_read_b32 v68, v7 offset:{FLAGL}")
for s in range(4):
    rd128(72 + 4*s, 33, QL + s*64)
e(f"s_add_u32 s48, s62, {CPA}")
e(f"s_add_u32 s49, s62, {CPB}")
e("s_waitcnt lgkmcnt(3)")
mfma(88, 96, 72, None)
e("v_readfirstlane_b32 s45, v68")
for s in range(1, 4):
    e(f"s_waitcnt lgkmcnt({3 - s})")
    mfma(88, 96 + 4*s, 72 + 4*s, 88)
e("s_cmp_lg_u32 s45, s58")
e("s_cbranch_scc1 L_w_ook")
e(f"s_cmp_lt_u32 s58, {TMO >> 2}")
e("s_cbranch_scc1 L_w_oretry")
lab("L_w_ook")
e("s_nop 5")
pack_granule(92, 88)
e(f"s_mov_b64 exec, {sM2}")
if not P["x_noloc"]: e(f"buffer_store_dwordx4 v[92:95], v34, {SWS}, s48 offen")
e(f"buffer_store_dwordx4 v[92:95], v34, {SWS}, s49 offen sc1")
stamp(10)
if P["stamps"]: e("s_mov_b32 s86, s58")
lab("L_w_fin")
stamp(14)
dump_stamps()
e("s_endpgm")

lab("L_A")
c("================= attention CU: 16 heads x 128 keys =================")
if P["xmap"]:
    e(f"s_lshr_b32 s45, {sR}, 4")
    e(f"s_lshl1_add_u32 {sX}, {sX}, s45")
    e(f"s_or_b32 {sR}, {sR}, 16")
if P["a_pf"]:
    e("s_load_dwordx2 s[20:21], s[0:1], 24")
    e("s_lshl_b32 s18, 1, 22")
    e("s_lshl_b32 s19, 1, 17")
    srd(20, 4194304)
    e(f"s_and_b32 s45, {sR}, 15")
    e("s_lshl_b32 s45, s45, 18")
    e(f"s_lshl_b32 s46, {sX}, 10")
    e("s_add_u32 s45, s45, s46")
    e("v_and_b32 v4, 31, v0")
    e("v_lshlrev_b32 v4, 13, v4")
    e("v_bfe_u32 v5, v0, 5, 1")
    if P["a_pf"] == 1:
        e("v_lshl_add_u32 v4, v5, 9, v4")
        e("s_add_u32 s45, s45, 384")
    else:
        e("v_lshl_add_u32 v4, v5, 7, v4")
        e("s_add_u32 s45, s45, 256")
e("s_waitcnt lgkmcnt(0)")
if P["a_pf"]:
    e(f"s_cmp_gt_u32 {sW}, 1")
    e("s_cbranch_scc1 L_a_nopf")
    e(f"s_cmp_eq_u32 {sW}, 1")
    e("s_cbranch_scc1 L_a_pf1")
    e(f"buffer_load_dword v253, v4, {SA}, s45 offen")
    e("s_branch L_a_nopf")
    lab("L_a_pf1")
    e(f"buffer_load_dword v253, v4, {SB}, s45 offen")
    lab("L_a_nopf")
e("s_load_dwordx2 s[16:17], s[0:1], 8")
e("s_load_dwordx2 s[12:13], s[0:1], 88")
e("s_load_dwordx2 s[28:29], s[0:1], 40")
e("s_load_dwordx2 s[36:37], s[0:1], 64")
e("s_load_dwordx2 s[40:41], s[0:1], 72")
srd(16, 8388608); srd(12, WS_BYTES)
e("v_and_b32 v1, 63, v0")
e("v_mov_b32 v7, 0")
e("v_lshlrev_b32 v8, 4, v1")
e(f"s_sub_u32 s45, {sR}, 16")
e("s_and_b32 s57, s45, 1")
e("s_lshr_b32 s45, s45, 1")
e(f"s_lshl_b32 s58, {sX}, 3")
e("s_add_u32 s58, s58, s45")
e(f"s_lshl_b32 s45, {sW}, 1")
e("v_xor_b32 v10, s45, v1")
e("v_lshlrev_b32 v10, 4, v10")
e("s_xor_b32 s45, s45, 9")
e("v_xor_b32 v11, s45, v1")
e("v_lshlrev_b32 v11, 4, v11")
e("s_lshl_b32 s59, s58, 17")
e("s_lshl_b32 s61, s57, 20")
if P["o_swz"]: e(f"s_lshl_b32 s45, {sX}, 11")
else: e("s_lshl_b32 s45, s58, 8")
e("s_add_u32 s61, s61, s45")
e(f"s_add_u32 s61, s61, {OP}")
e("s_waitcnt lgkmcnt(0)")
stamp(1)
if P["x_s2"]: e("s_branch L_a_fin")
e(f"s_load_dword {sTAG}, s[12:13], 0")
e("v_and_b32 v238, 7, v1")
e("v_lshlrev_b32 v238, 7, v238")
e("s_lshl_b32 s62, s57, 13")
e(f"s_lshl_b32 s45, {sW}, 10")
e("s_add_u32 s62, s62, s45")
e(f"s_add_u32 s62, s62, {FLG}")
def a_loop():
    if P["a_delay"]: e(f"s_sleep {P['a_delay']}")
    c("quarters of the key block in arrival order: mine (HBM), the partner's, then the two the weight CUs help with")
    e("s_lshl_b32 s60, s57, 15")
    e(f"s_lshl_b32 s48, {sW}, 10")
    e("s_add_u32 s60, s60, s48")
    e("s_xor_b32 s46, s60, 0x8000")
    e("s_add_u32 s60, s60, s59")
    e("s_add_u32 s46, s46, s59")
    q = lambda who, hi: [(who, hi, k) for k in range(4)]
    if P["w_ckv_ord"] == 0: order = q("o", 0) + q("p", 0) + q("o", 1) + q("p", 1)
    elif P["w_ckv_ord"] == 2: order = q("o", 0) + q("o", 1) + q("p", 0) + q("p", 1)
    else: order = q("o", 0) + [x for pr in zip(q("o", 1), q("p", 0)) for x in pr] + q("p", 1)
    for i, (who, hi, k) in enumerate(order):
        if i == 12:
            e(f"buffer_load_dword v239, v238, {SWS}, s62 offen sc1")
        e(f"s_add_u32 m0, s48, {(2*hi + (who == 'p'))*32768 + k*8192}")
        e(f"s_add_u32 s45, {'s60' if who == 'o' else 's46'}, {hi*65536 + k*8192}")
        dma(10 + (k & 1), SA, "s45", "nt", shared=True)
        if P["a_win2"] < 63 and P["a_win2"] <= i < (15 if P["a_mid"] == 3 else 12):
            e(f"s_waitcnt vmcnt({P['a_win2']})")
def a_addr():
    c("addresses")
    e("v_lshrrev_b32 v4, 3, v2")
    e("v_and_b32 v5, 7, v2")
    e("v_lshlrev_b32 v12, 2, v4")
    e("v_xor_b32 v5, v5, v12")
    e("v_lshl_or_b32 v5, v5, 1, v4")
    e("v_xor_b32 v5, v5, v3")
    e("v_lshlrev_b32 v5, 4, v5")
    e("v_lshl_add_u32 v5, v2, 10, v5")
    e(f"s_lshl_b32 s45, {sW}, 14")
    e("v_add_u32 v12, s45, v5")
    e("v_xor_b32 v13, 0x40, v12")
    e("v_xor_b32 v14, 0x80, v12")
    e("v_xor_b32 v15, 0xc0, v12")
    e(f"v_add_u32 v20, {A_QL}, v5")
    e("v_xor_b32 v21, 0x40, v20")
    e("v_xor_b32 v22, 0x80, v20")
    e("v_xor_b32 v23, 0xc0, v20")
    e("v_lshrrev_b32 v4, 2, v2")
    e("v_lshl_add_u32 v4, v3, 2, v4")
    e("v_lshrrev_b32 v5, 3, v4")
    e("v_and_b32 v16, 7, v4")
    e("v_lshlrev_b32 v17, 2, v5")
    e("v_xor_b32 v16, v16, v17")
    e("v_lshl_or_b32 v16, v16, 1, v5")
    e("v_bfe_u32 v5, v2, 1, 1")
    e("v_xor_b32 v16, v16, v5")
    e(f"s_and_b32 s45, {sW}, 1")
    e("s_lshl_b32 s45, s45, 3")
    e("v_xor_b32 v16, s45, v16")
    e("v_lshlrev_b32 v16, 4, v16")
    e("v_and_b32 v5, 1, v2")
    e("v_lshl_add_u32 v16, v5, 3, v16")
    e("v_lshl_add_u32 v16, v4, 10, v16")
    e(f"s_lshr_b32 s45, {sW}, 1")
    e("s_lshl_b32 s45, s45, 8")
    e("v_add_u32 v16, s45, v16")
    e("v_xor_b32 v17, 0x20, v16")
    e("v_xor_b32 v18, 0x40, v16")
    e("v_xor_b32 v19, 0x60, v16")
    for tp in range(4):
        e(f"v_add_u32 v{24+tp}, 0x10000, v{16+tp}")
    c("Q write addresses: heads 2w, 2w+1")
    e(f"s_lshl_b32 s45, {sW}, 2")
    e("s_and_b32 s46, s45, 15")
    e(f"s_cmp_gt_u32 {sW}, 3")
    e("s_cselect_b32 s47, 9, 0")
    e("s_xor_b32 s46, s46, s47")
    e("v_xor_b32 v28, s46, v1")
    e("v_lshlrev_b32 v28, 4, v28")
    e(f"s_lshl_b32 s45, {sW}, 11")
    e(f"s_add_u32 s45, s45, {A_QL}")
    e("v_add_u32 v28, s45, v28")
    e("v_xor_b32 v29, 0x20, v28")
    e("v_lshlrev_b32 v30, 2, v2")
    e(f"v_add_u32 v30, {A_MX}, v30")
    e("v_mov_b32 v4, 0xff800000")
    e("ds_write_b32 v30, v4")
    e("v_lshlrev_b32 v242, 2, v1")
    e(f"v_add_u32 v242, {A_SM}, v242")
    e(f"s_lshl_b32 s45, {sW}, 8")
    e("v_add_u32 v254, s45, v242")
    e(f"s_lshr_b32 s45, {sW}, 1")
    e("s_lshl_b32 s45, s45, 10")
    e(f"s_and_b32 s46, {sW}, 1")
    e("s_lshl_b32 s46, s46, 3")
    e("s_add_u32 s45, s45, s46")
    e(f"s_add_u32 s45, s45, {A_PL}")
    e("v_add_u32 v31, s45, v8")
    e(f"v_add_u32 v236, {A_PL}, v8")
    c("O tile t, lane (n, g): 8 bytes at chunk 2t + (g>>1), half g&1 of the 128-B line of head n")
    e("v_lshrrev_b32 v246, 1, v3")
    e("v_and_b32 v4, 7, v2")
    e("v_xor_b32 v246, v246, v4")
    e("v_lshlrev_b32 v246, 4, v246")
    e("v_and_b32 v4, 1, v3")
    e("v_lshl_add_u32 v246, v4, 3, v246")
    e("v_lshl_add_u32 v246, v2, 7, v246")
    e(f"s_lshl_b32 s45, {sW}, 11")
    e(f"s_add_u32 s45, s45, {A_OT}")
    e("v_add_u32 v246, s45, v246")
    e("v_xor_b32 v247, 0x20, v246")
    e("v_xor_b32 v240, 0x40, v246")
    e("v_xor_b32 v241, 0x60, v246")
    e("v_lshrrev_b32 v4, 3, v1")
    e("v_and_b32 v5, 7, v1")
    e("v_xor_b32 v248, v4, v5")
    e("v_lshlrev_b32 v248, 4, v248")
    e("v_lshl_add_u32 v248, v4, 7, v248")
    e("v_add_u32 v248, s45, v248")
    e("v_lshlrev_b32 v237, 16, v4")
    e("v_lshl_add_u32 v237, v5, 4, v237")
    if P["o_swz"]:
        e(f"s_and_b32 s45, {sW}, 6")
        e("s_xor_b32 s45, s45, s58")
        e("s_and_b32 s45, s45, 7")
        e("v_xor_b32 v4, s45, v4")
        e("v_lshl_add_u32 v237, v4, 8, v237")
    e(f"s_lshl_b32 s45, {sW}, 8")
    e(f"s_add_u32 s45, s45, {A_CK}")
    e("v_lshl_add_u32 v249, v1, 2, s45")
    e("v_lshlrev_b32 v9, 9, v3")
    e("v_lshl_add_u32 v9, v2, 2, v9")
    e(f"v_add_u32 v9, {A_CK}, v9")
    e(f"s_lshr_b32 s45, {sW}, 1")
    e("s_lshl_b32 s45, s45, 14")
    e("s_add_u32 s61, s61, s45")
    e(f"s_and_b32 s45, {sW}, 1")
    e("s_lshl_b32 s45, s45, 7")
    e("s_add_u32 s61, s61, s45")
    e(f"s_lshr_b32 s45, {sX}, 2")
    e("s_lshl_b32 s63, s45, 15")
    e("s_lshl_b32 s45, s57, 14")
    e("s_add_u32 s63, s63, s45")
    e(f"s_lshl_b32 s45, {sW}, 11")
    e("s_add_u32 s63, s63, s45")
    e(f"s_add_u32 s63, s63, {QA}")
    e("s_lshl_b32 s96, s57, 6")
    e("s_add_u32 s96, s96, s58")
    e("s_lshl_b32 s96, s96, 10")
    e(f"s_add_u32 s96, s96, {ST}")
    e("s_mov_b32 s97, 0x3e0293ee")
    srd(8, 2048); srd(28, 4194304); srd(36, 1409024); srd(40, 2048)
    consts()
    c("output-projection role: column slice ms = (r-16)>>1, head pair hf = r&1")
    e(f"s_and_b32 s99, {sR}, 15")
    e("s_lshr_b32 s98, s99, 1")
    e("s_lshl_b32 s99, s98, 7")
    e("v_and_b32 v243, 7, v1")
    e("v_and_b32 v244, 1, v3")
    e("v_lshlrev_b32 v244, 1, v244")
    e("v_xor_b32 v243, v243, v244")
    e("v_lshlrev_b32 v243, 4, v243")
    e("v_lshrrev_b32 v244, 3, v1")
    e("v_lshl_add_u32 v243, v244, 10, v243")
    e("v_xor_b32 v244, 64, v243")
    e(f"s_and_b32 s45, {sW}, 1")
    e("s_lshl_b32 s45, s45, 6")
    e("v_xor_b32 v245, s45, v243")
    t0x("s100")
    e("s_lshl_b32 s100, s100, 4")
    e("s_mul_i32 s45, s57, 96")
    e("s_add_u32 s100, s100, s45")
    e(f"s_lshl_b32 s45, {sW}, 3")
    e("s_add_u32 s100, s100, s45")
    e("s_lshl_b32 s100, s100, 10")
    e("s_add_u32 s100, s100, s99")
    e(f"s_lshl_b32 s101, {sX}, 19")
    e("s_lshl_b32 s45, s57, 18")
    e("s_add_u32 s101, s101, s45")
    e(f"s_lshl_b32 s45, {sW}, 15")
    e("s_add_u32 s101, s101, s45")
    e("s_add_u32 s101, s101, s99")
    if P["w_pf"] in (2, 7, 8):
        c("waves 0-3 / 4-5 pull a contiguous 1/16 of this group's w_o / w2 rows into L2 once Q is in; waves 6-7 touch nothing")
        e("v_lshlrev_b32 v255, 7, v1")
        e(f"s_and_b32 s46, {sR}, 15")
        e(f"s_lshl_b32 s47, {sX}, 19")
        e("s_lshl_b32 s45, s46, 15")
        e("s_add_u32 s47, s47, s45")
        e(f"s_lshl_b32 s45, {sW}, 13")
        e("s_add_u32 s47, s47, s45")
        t0x("s48")
        e("s_lshl_b32 s48, s48, 14")
        e("s_mul_i32 s46, s46, 12288")
        e("s_add_u32 s48, s48, s46")
        e(f"s_and_b32 s45, {sW}, 1")
        e("s_mul_i32 s45, s45, 6144")
        e("s_add_u32 s48, s48, s45")
        e(f"s_cmp_lt_u32 {sW}, 4")
        e("s_cselect_b32 s47, s47, s48")
        e("s_cselect_b32 s20, s28, s36")
        e("s_cselect_b32 s21, s29, s37")
        e("s_cselect_b32 s22, s30, s38")
        e(f"s_cmp_lt_u32 {sW}, 6")
        e("s_cselect_b32 s22, s22, 0")
        e("s_mov_b32 s23, 0x00020000")
def p3w():
    e(f"s_lshl_b32 s46, {sW}, 12")
    for i in range(4):
        e(f"s_add_u32 m0, s46, {A_WO + i*1024}")
        e(f"s_add_u32 s45, s101, {i*8192}")
        dma(243 + (i & 1), SD, "s45", "nt")
    e(f"s_lshl_b32 s46, {sW}, 10")
    e(f"s_add_u32 m0, s46, {A_W2}")
    e(f"s_cmp_gt_u32 {sW}, 3")
    dma(245, SF, "s100", "nt")
    e("s_cbranch_scc1 L_a_now2")
    e(f"s_add_u32 m0, s46, {A_W2 + 8192}")
    e("s_add_u32 s45, s100, 65536")
    dma(245, SF, "s45", "nt")
    lab("L_a_now2")
if P["a_nat"]:
    a_addr()
    if P["w_pf"] == 7: e(f"buffer_load_dword v253, v255, s[20:23], s47 offen")
    if P["a_nat"] == 1:
        c("the bulk stream starts once the lines the weight CUs wait for are in")
        e("s_waitcnt vmcnt(0)")
        e("s_barrier")
    if P["w_pf"] == 8: e(f"buffer_load_dword v253, v255, s[20:23], s47 offen")
    a_loop()
else:
    a_loop()
    a_addr()
def mk_trs(ts):
    trs = []
    for t in ts:
        for tp in range(4):
            base = 96 + (tp*4 + t)*4
            areg = (16 if t < 2 else 24) + tp
            trs.append((base, areg, (t & 1)*32768))
            trs.append((base + 2, areg, (t & 1)*32768 + 16384))
    return trs
def q_check(ok):
    e("v_max3_u32 v4, v224, v225, v226")
    e("v_max3_u32 v5, v227, v228, v229")
    e("v_max3_u32 v4, v4, v230, v231")
    e("v_max_u32 v4, v4, v5")
    e("v_cmp_eq_u32 vcc, -1, v4")
    e(f"s_cbranch_vccz {ok}")
def q_load():
    e(f"buffer_load_dwordx4 v[224:227], v8, {SWS}, s63 offen sc1")
    e(f"buffer_load_dwordx4 v[228:231], v8, {SWS}, s63 offen offset:1024 sc1")
def q_write():
    if P["x_dbg"]: e("s_memrealtime s[70:71]")
    stamp(3)
    e("ds_write_b128 v28, v[224:227]")
    e("ds_write_b128 v29, v[228:231] offset:1024")
def a_reads(cond, skip):
    e(f"s_cmp_{cond}_u32 {sW}, {2*P['a_mid'] - 1}")
    e(f"s_cbranch_scc1 {skip}")
    for s in range(16):
        rd128(32 + 4*s, 12 + (s & 3), (s >> 2)*256)
    lab(skip)
def q_first(name):
    e("s_cmp_lg_u64 s[48:49], 0")
    e(f"s_cbranch_scc1 {name}")
    if P["a_qk"] < 63: e(f"s_waitcnt vmcnt({P['a_qk']})")
    q_load()
    lab(name)
def flags_in():
    c("Q rows may be read only after their producers have marked them empty")
    e("s_waitcnt vmcnt(4)")
    e(f"v_cmp_ne_u32 vcc, {sTAG}, v239")
    e("s_mov_b64 s[48:49], vcc")
e("s_waitcnt lgkmcnt(0)")
e(f"s_add_u32 {sTAG}, {sTAG}, 1")
e(f"s_mov_b32 {sCNT}, 0")
if P["a_mid"] == 3:
    flags_in()
    if P["q_when"] == 0: q_first("L_a_q1")
else:
    e("s_waitcnt vmcnt(9)")
stamp(8)
e("s_barrier")
c("the first quarters are in: their fragments go to registers while the rest lands")
a_reads("gt", "L_a_ar1")
for t_ in mk_trs(range(P["a_mid"])): tr(*t_)
if P["a_mid"] == 2: flags_in()
if P["q_when"] == 1 or P["a_mid"] == 2: q_first("L_a_q1")
e("s_waitcnt vmcnt(2)")
e("s_cmp_eq_u64 s[48:49], 0")
e("s_cbranch_scc1 L_a_land")
e("s_waitcnt vmcnt(0)")
lab("L_a_land")
if P["x_dbg"]: e("s_memrealtime s[68:69]")
stamp(2)
if P["x_exit"]: e("s_branch L_a_fin")
e("s_barrier")
e("s_cmp_lg_u64 s[48:49], 0")
e("s_cbranch_scc1 L_a_slow0")
e("s_waitcnt vmcnt(0)")
q_check("L_a_fast")
q_load()
lab("L_a_slow0")
a_reads("le", "L_a_ar2")
e("s_cmp_eq_u64 s[48:49], 0")
e("s_cbranch_scc1 L_a_q")
lab("L_a_flg")
e(f"buffer_load_dword v239, v238, {SWS}, s62 offen sc1")
e(f"s_add_u32 {sCNT}, {sCNT}, 1")
e("s_waitcnt vmcnt(0)")
e(f"v_cmp_ne_u32 vcc, {sTAG}, v239")
e("s_cbranch_vccz L_a_qre")
e(f"s_cmp_lt_u32 {sCNT}, {TMO}")
e("s_cbranch_scc1 L_a_flg")
lab("L_a_qre")
if P["bo_q"]: e(f"s_sleep {P['bo_q']}")
q_load()
lab("L_a_q")
e("s_waitcnt vmcnt(0)")
q_check("L_a_qok")
e(f"s_add_u32 {sCNT}, {sCNT}, 1")
e(f"s_cmp_lt_u32 {sCNT}, {TMO}")
e("s_cbranch_scc1 L_a_qre")
lab("L_a_qok")
q_write()
e("s_waitcnt lgkmcnt(0)")
e("s_branch L_a_qk")
lab("L_a_fast")
q_write()
e(f"s_cmp_gt_u32 {sW}, {2*P['a_mid'] - 1}")
e("s_cbranch_scc1 L_a_ar3")
e("s_waitcnt lgkmcnt(0)")
e("s_branch L_a_qk")
lab("L_a_ar3")
for s in range(16):
    rd128(32 + 4*s, 12 + (s & 3), (s >> 2)*256)
e("s_waitcnt lgkmcnt(15)")
lab("L_a_qk")
e("s_barrier")
stamp(4)
c("scores for key tile w; the transposed fragments of the last quarter follow the Q fragments")
trs = mk_trs(range(P["a_mid"], 4))
for s in range(12):
    rd128(160 + 4*s, 20 + (s & 3), (s >> 2)*256)
if P["hint"]:
    e(f"s_cmp_lg_u32 {sW}, 1")
    e("s_cbranch_scc1 L_a_noh")
    e(f"v_mov_b32 v5, {sTAG}")
    e(f"s_sub_u32 s45, s96, {ST}")
    e("s_lshr_b32 s45, s45, 3")
    e(f"s_add_u32 s45, s45, {HINT}")
    e("s_mov_b64 exec, 1")
    e(f"buffer_store_dword v5, v7, {SWS}, s45 offen sc1")
    e("s_mov_b64 exec, -1")
    lab("L_a_noh")
elif P["w_pf"] == 2:
    e(f"buffer_load_dword v253, v255, s[20:23], s47 offen")
issued = 0
for s in range(16):
    if s == 3 and P["hint"] and P["w_pf"] == 2:
        e(f"buffer_load_dword v253, v255, s[20:23], s47 offen")
    e(f"s_waitcnt lgkmcnt({(11 if s < 4 else 15 - s) + issued})")
    mfma(232, 32 + 4*s, 160 + 4*s, None if s == 0 else 232)
    if s < 4:
        rd128(160 + 4*(s + 12), 20 + (s & 3), 3*256)
    if 3 <= s < 15:
        n = min((s + 1) - issued, len(trs))
        for _ in range(n): tr(*trs.pop(0))
        issued += n
e("s_nop 7")
e("v_max3_f32 v4, v232, v233, v234")
e("v_max_f32 v4, v4, v235")
e("ds_max_f32 v30, v4")
n = len(trs)
for t_ in trs: tr(*t_)
e(f"s_waitcnt lgkmcnt({n})")
e("s_barrier")
stamp(5)
e("ds_read_b32 v4, v30")
e("s_waitcnt lgkmcnt(0)")
lab("L_a_sm")
e("v_mul_f32 v4, s97, v4")
for k in range(4):
    e(f"v_fma_f32 v{232+k}, v{232+k}, s97, -v4")
for k in range(4):
    e(f"v_exp_f32 v{232+k}, v{232+k}")
e("s_nop 0")
e("v_cvt_pk_bf16_f32 v160, v232, v233")
e("v_cvt_pk_bf16_f32 v161, v234, v235")
e("v_add_f32 v232, v232, v233")
e("v_add_f32 v234, v234, v235")
e("ds_write_b64 v31, v[160:161]")
e("v_add_f32 v232, v232, v234")
e("ds_write_b32 v254, v232")
e("s_waitcnt lgkmcnt(0)")
e("s_barrier")
stamp(6)
for t in range(4):
    rd128(160 + 4*t, 236, t*1024)
c("P.V for c range w; a finished tile is packed and staged under the next tile's MFMAs")
OW = (246, 247, 240, 241)
def o_pack(tp):
    e(f"v_cvt_pk_bf16_f32 v{192+2*tp}, v{176+4*tp}, v{177+4*tp}")
    e(f"v_cvt_pk_bf16_f32 v{193+2*tp}, v{178+4*tp}, v{179+4*tp}")
    e(f"ds_write_b64 v{OW[tp]}, v[{192+2*tp}:{193+2*tp}]")
if P["pvt"]:
    for t in range(4):
        e(f"s_waitcnt lgkmcnt({3 - t})")
        for tp in (0, 1):
            mfma(176 + 4*tp, 96 + (tp*4 + t)*4, 160 + 4*t, None if t == 0 else 176 + 4*tp)
    k = 0
    for t in range(4):
        for tp in (2, 3):
            mfma(176 + 4*tp, 96 + (tp*4 + t)*4, 160 + 4*t, None if t == 0 else 176 + 4*tp)
            k += 1
            if k == 6:
                e("s_nop 0"); o_pack(0)
            if k == 7: o_pack(1)
    e("s_nop 3")
    o_pack(2)
    e("s_nop 0")
    o_pack(3)
else:
    for t in range(4):
        e(f"s_waitcnt lgkmcnt({3 - t})")
        for tp in range(4):
            mfma(176 + 4*tp, 96 + (tp*4 + t)*4, 160 + 4*t, None if t == 0 else 176 + 4*tp)
    e("s_nop 4")
    for tp in range(4): o_pack(tp)
e("ds_read_b128 v[208:211], v248")
e("ds_read_b128 v[212:215], v248 offset:1024")
c("row checksums: every lane adds up its 8 dwords, the statistics wave adds the 8 parts of a row")
e("v_add3_u32 v216, v192, v193, v194")
e("v_add3_u32 v217, v195, v196, v197")
e("v_add3_u32 v216, v216, v198, v199")
e("v_add_u32 v216, v216, v217")
e("ds_write_b32 v249, v216")
e("s_add_u32 s45, s61, 0x80000")
e("s_waitcnt lgkmcnt(2)")
OST = ("sc1", "sc0 sc1", "sc1 nt", "sc0 sc1 nt")[P["o_st"]]
e(f"buffer_store_dwordx4 v[208:211], v237, {SWS}, s61 offen {OST}")
e("s_waitcnt lgkmcnt(1)")
e(f"buffer_store_dwordx4 v[212:215], v237, {SWS}, s45 offen {OST}")
e(f"s_cmp_eq_u32 {sW}, 0")
e("s_cbranch_scc1 L_a_stat")
e("s_waitcnt lgkmcnt(0)")
e("s_barrier")
e("s_branch L_a_nost")
lab("L_a_stat")
for k in range(4):
    e(f"ds_read2st64_b32 v[{200+2*k}:{201+2*k}], v242 offset0:{2*k} offset1:{2*k+1}")
e(f"v_mov_b32 v7, {sTAG}")
e("s_waitcnt lgkmcnt(0)")
e("v_add_f32 v200, v200, v201")
e("v_add_f32 v202, v202, v203")
e("v_add_f32 v204, v204, v205")
e("v_add_f32 v206, v206, v207")
e("v_add_f32 v200, v200, v202")
e("v_add_f32 v204, v204, v206")
e("v_add_f32 v5, v200, v204")
swap_reduce("add", 5, 200, 16)
swap_reduce("add", 5, 200, 32)
if P["st_x"]:
    e("v_lshrrev_b32 v242, 2, v2")
    e("v_lshlrev_b32 v242, 8, v242")
    e("v_lshl_add_u32 v242, v3, 6, v242")
    e("v_and_b32 v200, 3, v2")
    e("v_lshl_add_u32 v242, v200, 4, v242")
e("s_barrier")
for k in range(4):
    e(f"ds_read2_b32 v[{216+2*k}:{217+2*k}], v9 offset0:{32*k} offset1:{32*k+16}")
if P["st_sleep"]: e(f"s_sleep {P['st_sleep']}")
e("s_waitcnt lgkmcnt(2)")
e("v_add3_u32 v6, v216, v217, v218")
e("s_waitcnt lgkmcnt(0)")
e("v_add3_u32 v220, v220, v221, v222")
e("v_add3_u32 v6, v6, v219, v223")
e("v_add_u32 v6, v6, v220")
e(f"buffer_store_dwordx4 v[4:7], v{242 if P['st_x'] else 8}, {SWS}, s96 offen sc1")
lab("L_a_nost")
stamp(7)
if P["x_dbg"]: e("s_memrealtime s[72:73]")
if not P["p3w_early"]: p3w()
c("addresses of the output projection")
e("v_lshrrev_b32 v4, 2, v2")
e("v_and_b32 v5, 3, v2")
e("v_lshl_add_u32 v31, v3, 3, v4")
e("v_lshrrev_b32 v50, 1, v4")
e("v_and_b32 v51, 1, v3")
e("v_lshl_or_b32 v50, v51, 1, v50")
e(f"s_and_b32 s45, {sW}, 3")
e("v_xor_b32 v50, s45, v50")
e("v_lshlrev_b32 v50, 5, v50")
e("v_lshl_add_u32 v50, v5, 3, v50")
e("v_lshl_add_u32 v50, v31, 7, v50")
e("v_and_b32 v32, 1, v2")
e("v_lshrrev_b32 v36, 1, v2")
e("v_lshlrev_b32 v36, 3, v36")
e("v_lshl_add_u32 v36, v3, 1, v36")
e(f"s_lshl_b32 s45, {sW}, 6")
e("v_add_u32 v36, s45, v36")
e(f"v_mul_u32_u24 v38, {KBS}, v32")
e("v_add_u32 v36, v36, v38")
e("v_lshrrev_b32 v35, 1, v1")
e("v_lshl_add_u32 v35, v35, 3, v38")
e(f"s_and_b32 s45, {sW}, 1")
e("s_lshl_b32 s45, s45, 8")
e("v_add_u32 v35, s45, v35")
e("v_lshl_add_u32 v38, v3, 4, v38")
e("v_lshlrev_b32 v49, 3, v2")
e("v_lshl_add_u32 v49, v3, 1, v49")
e("s_lshl_b32 s100, s57, 10")
e("s_add_u32 s100, s100, s99")
e(f"buffer_load_ushort v180, v49, {SX}, s100 offen")
e("v_lshlrev_b32 v92, 12, v3")
e("v_lshl_add_u32 v92, v2, 4, v92")
e("v_lshlrev_b32 v93, 8, v2")
e("v_lshl_add_u32 v93, v3, 4, v93")
e(f"s_lshl_b32 s46, {sW}, 6")
e("v_add_u32 v93, s46, v93")
e("s_lshl_b32 s59, s98, 13")
e(f"s_lshl_b32 s46, {sX}, 9")
e("s_add_u32 s59, s59, s46")
e("s_lshl_b32 s46, s57, 8")
e("s_add_u32 s59, s59, s46")
e(f"s_add_u32 s59, s59, {OUTP}")
e(f"s_lshl_b32 s60, {sX}, 14")
e("s_lshl_b32 s47, s57, 13")
e("s_add_u32 s60, s60, s47")
if P["inl"]:
    e(f"s_and_b32 s47, {sW}, 1")
    e("s_lshl_b32 s47, s47, 12")
    e("s_add_u32 s60, s60, s47")
else:
    e("v_lshlrev_b32 v34, 10, v3")
    e("v_lshl_add_u32 v34, v2, 4, v34")
    e(f"s_lshr_b32 s47, {sW}, 2")
    e("s_lshl_b32 s47, s47, 12")
    e("s_add_u32 s60, s60, s47")
    e(f"s_and_b32 s47, {sW}, 3")
    e("s_lshl_b32 s47, s47, 8")
    e("s_add_u32 s60, s60, s47")
e(f"s_add_u32 s61, s60, {CPB}")
e(f"s_add_u32 s60, s60, {CPA}")
if P["stamps"] == 3:
    e("s_waitcnt vmcnt(7)")
    stamp(8)
    e("s_waitcnt vmcnt(0)")
    stamp(15)
e(f"s_cmp_lt_u32 {sW}, 4")
e("s_cbranch_scc1 L_a_nohg")
e(f"s_cmp_eq_u32 {sW}, 7")
e("s_cbranch_scc1 L_a_nohg")
c("waves 4-6: sum the 16 partials of 16 granules of h, SiLU")
e(f"s_cmp_ge_u32 {sX}, 6")
e("s_cselect_b32 s45, 10, 11")
e("s_lshl_b32 s45, s45, 3")
e("s_mul_i32 s46, s57, 48")
e("s_sub_u32 s45, s45, s46")
e(f"s_lshl_b32 s46, {sW}, 4")
e("s_sub_u32 s46, s46, 64")
e("v_add_u32 v60, s46, v2")
e("v_cmp_gt_u32 s[46:47], s45, v60")
e(f"s_lshl_b32 s48, {sX}, 15")
e("s_mul_i32 s49, s57, 768")
e("s_add_u32 s48, s48, s49")
e(f"s_lshl_b32 s49, {sW}, 8")
e("s_add_u32 s48, s48, s49")
e(f"s_add_u32 s48, s48, {HPA - 1024}")
e(f"s_add_u32 s49, s48, {HPB-HPA}")
e("v_lshlrev_b32 v60, 11, v3")
e("v_lshl_add_u32 v60, v2, 4, v60")
e("v_add_u32 v61, 0x2000, v60")
e("v_add_u32 v62, 0x4000, v60")
e("v_add_u32 v63, 0x6000, v60")
dual_poll4("hh", 64, [60, 61, 62, 63], "s48", "s49", "s[46:47]", lr=P["lr2"])
sum4_reduce(64)
round_bf16(64)
e("v_mul_f32 v65, 0xbfb8aa3b, v64")
e("v_exp_f32 v65, v65")
e("s_nop 0")
e("v_add_f32 v65, 1.0, v65")
e("v_rcp_f32 v65, v65")
e("s_nop 0")
e("v_mul_f32 v64, v64, v65")
e("v_cndmask_b32 v64, 0, v64, s[46:47]")
e("v_cvt_pk_bf16_f32 v64, v64, v64")
e(f"ds_write_b16 v36, v64 offset:{KB + 256}")
lab("L_a_nohg")
e("s_waitcnt vmcnt(0) lgkmcnt(0)")
stamp(9)
e("s_barrier")
e(f"s_cmp_gt_u32 {sW}, 3")
e("s_cbranch_scc1 L_a_nofrag")
for s in range(3):
    rd128(60 + 4*s, 38, KB + 512 + s*64)
    tr(144 + 4*s, 50, A_W2 + s*4096)
    tr(146 + 4*s, 50, A_W2 + s*4096 + 512)
for s in range(8):
    tr(112 + 4*s, 50, A_WO + s*4096)
    tr(114 + 4*s, 50, A_WO + s*4096 + 512)
e("s_waitcnt lgkmcnt(0)")
for s in range(3):
    mfma(176, 144 + 4*s, 60 + 4*s, None if s == 0 else 176)
if P["inl"]:
    e("s_branch L_a_noh25")
    lab("L_a_nofrag")
    e(f"s_cmp_gt_u32 {sW}, 5")
    e("s_cbranch_scc1 L_a_noh25")
    stamp(10)
    dual_poll4("h25", 64, [8, 8, 8, 8], "s60", "s61", lr=P["lr2"], offs=(0, 1024, 2048, 3072))
    stamp(11)
    if P["x_dbg"]: e("s_memrealtime s[74:75]")
    sum4(64)
    e("v_cvt_pk_bf16_f32 v64, v64, v65")
    e("v_cvt_pk_bf16_f32 v65, v66, v67")
    e(f"ds_write_b64 v35, v[64:65] offset:{KB}")
    e("s_waitcnt lgkmcnt(0)")
else:
    lab("L_a_nofrag")
    stamp(10)
    dual_poll("h25", 72, 34, "s60", "s61", lr=P["lr2"], bo=P["bo_h25"])
    stamp(11)
    unpack_granule(72)
    halving_reduce(72)
    e("v_cvt_pk_bf16_f32 v72, v72, v72")
    e(f"ds_write_b16 v36, v72 offset:{KB}")
    e("s_waitcnt lgkmcnt(0)")
lab("L_a_noh25")
e("s_barrier")
e(f"s_cmp_gt_u32 {sW}, 3")
e("s_cbranch_scc1 L_a_nop3b")
c("P3b: 64 output columns over two heads (the FFN part is already in the accumulator)")
for s in range(8):
    rd128(56 + 4*s, 38, KB + s*64)
for s in range(8):
    e(f"s_waitcnt lgkmcnt({7 - s})")
    mfma(176, 112 + 4*s, 56 + 4*s, 176)
e("s_nop 7")
pack_granule(88, 176)
e(f"s_mov_b64 exec, {sM2}")
e(f"ds_write_b128 v93, v[88:91] offset:{KB + 2048}")
e("s_mov_b64 exec, -1")
e("s_waitcnt lgkmcnt(0)")
lab("L_a_nop3b")
e("s_barrier")
e(f"s_cmp_lg_u32 {sW}, 4")
e("s_cbranch_scc1 L_a_fin")
e("s_mov_b32 exec_hi, 0")
rd128(88, 8, KB + 2048)
e(f"s_and_b32 s48, {sR}, 15")
e("s_lshl_b32 s48, s48, 12")
e(f"s_add_u32 s48, s48, {OUTP}")
e("s_waitcnt lgkmcnt(0)")
e(f"buffer_store_dwordx4 v[88:91], v92, {SWS}, s59 offen sc1")
e("s_mov_b64 exec, -1")
stamp(12)
e(f"s_cmp_lg_u32 {sX}, s98")
e("s_cbranch_scc1 L_a_fin")
c("reducer for (column slice ms, batch r&1): 16 partials")
if P["red_sleep"] == 99: e("s_waitcnt vmcnt(0)")
elif P["red_sleep"]:
    c("back off before the first poll: reading a line while it is being written slows the write down")
    e(f"s_sleep {P['red_sleep']}")
dual_poll4("red", 64, [8, 8, 8, 8], "s48", "s48", offs=(0, 1024, 2048, 3072))
stamp(13)
sum4_reduce(64)
e("v_lshlrev_b32 v180, 16, v180")
e("v_add_f32 v64, v64, v180")
e("v_cvt_pk_bf16_f32 v64, v64, v64")
e(f"buffer_store_short v64, v49, {SO}, s100 offen {'sc1' if P['out_sc1'] == 1 else 'sc0 sc1' if P['out_sc1'] == 2 else 'nt' if P['out_sc1'] == 3 else ''}")
e(f"s_cmpk_lg_u32 s2, {4 if P['xmap'] else 0x80}")
e("s_cbranch_scc1 L_a_fin")
e(f"v_mov_b32 v57, {sTAG}")
e("v_mov_b32 v58, 0")
e("s_mov_b64 exec, 1")
e(f"buffer_store_dword v57, v58, {SWS}, 0 offen sc1")
if P["x_amp"]:
    e("s_memrealtime s[66:67]")
    e("s_waitcnt lgkmcnt(0)")
    e(f"s_sub_u32 s45, s{P['x_amp']}, s64")
    e("s_lshl_b32 s45, s45, 2")
    e("s_add_u32 s45, s45, s66")
    lab("L_amp")
    e("s_memrealtime s[46:47]")
    e("s_waitcnt lgkmcnt(0)")
    e("s_sub_u32 s46, s46, s45")
    e("s_cmp_lt_i32 s46, 0")
    e("s_cbranch_scc1 L_amp")
elif P["x_dbg"]:
    e("s_load_dwordx2 s[20:21], s[0:1], 80")
    e("s_memrealtime s[66:67]")
    srd(20, 256)
    e("s_waitcnt lgkmcnt(0)")
    for k, r_ in enumerate((66, 68, 70, 72, 74)):
        e(f"s_sub_u32 s45, s{r_}, s64")
        e("v_mov_b32 v57, s45")
        e(f"buffer_store_dword v57, v58, s[20:23], 0 offen offset:{4*k}")
for _ in range(P["x_endsleep"]): e("s_sleep 127")
lab("L_a_fin")
stamp(14)
dump_stamps()
lab("L_end")
e("s_endpgm")
lab("L_codeend")
out.append('.section .rodata,"a"')
out.append(".p2align 6")
out.append(f".amdhsa_kernel {KN}")
out.append("""  .amdhsa_next_free_vgpr 256
  .amdhsa_next_free_sgpr 102
  .amdhsa_accum_offset 256
  .amdhsa_group_segment_fixed_size 0
  .amdhsa_kernarg_size 96
  .amdhsa_user_sgpr_count 2
  .amdhsa_user_sgpr_kernarg_segment_ptr 1
  .amdhsa_system_sgpr_workgroup_id_x 1
.end_amdhsa_kernel""")
open(sys.argv[1], "w").write("\n".join(out) + "\n")
```

```python
import sys
NAME = "parallel_sum__compressed_kv_cla__dense_activation_silu__decode"
KN = NAME + "_kernel"

P = dict(
    stamps=0,
    a_delay=0,
    a_win=63,
    a_nwin=0,
    red_sleep=12,
    localrounds=16,
    x_exit=0, x_s2=0, x_wc=0, x_half=0,
    a_fpos=12,
    a_win2=3,
    w_win=63,
    p3w_early=0,
    w_pf=2,
    h0_k=2,
    s2_gate=0,
    h0_sleep=0,
    a_lag=4,
    nt=0,
    nt_ckv=0,
    x_dbg=0, x_amp=0, x_endsleep=0, x_startsleep=0,
    st_sleep=0,
    pf_nt=0,
    xmap=0,
    lr2=32,
    out_lds=1,
    a_qk=1,
    w_ckv=1,
    w_ckv_ord=0,
    a_pf=2,
    qk_stag=0,
    smask=0xffff,
    tr_pre=8,
    out_sc1=0, x_noloc=0,
    w_slow=0,
    inl=0, pvt=1,
    a_nat=1, w_nat=1,
    h2w=1,
    a_mid=2,
    q_when=0,
    o_st=0, o_pre=0, st_x=1, hint=0, hint_d=30, hint_spec=1,
    ffn_early=1, bo_st=0, bo_q=0, bo_h25=0,
    o_swz=0,
    pf_split=0,
    st_asym=0, pf_n=4, pf_late=0,
    w2_delay=0,
)
for a in sys.argv[2:]:
    k, v = a.split("=")
    assert k in P, k
    P[k] = int(v, 0)

EPOCH = 0x0
FLG = 0x4000
CKF = 0x2000
QPA, QPB = 0x10000, 0x30000
QA = 0x50000
ST = 0x340000
HINT = 0x8000
HPA, HPB = 0xC0000, 0x300000
CPA, CPB = 0x70000, 0x90000
OUTP = 0xB0000
OP = 0x100000
TS = 0x400000
WS_BYTES = 0x10000000
R0 = 0
XN = 32768; XNS = 1088
QL = XN + 2304; QLS = 320
QST = XN + 2944
WT = XN + 5248; WTS = 192
FLAGL = XN + 5632
CKT = XN + 5760
R1, W1L, OIN = 38912, 83968, 100352
A_QL, A_PL, A_MX, A_SM = 131072, 147456, 151552, 152064
A_CK = 81920
A_OT = 65536
A_WO, A_W2, KB = 0, 32768, 45056
KBS = 832
LDS_BYTES = 154880
TMO = 1 << 18

out = []
def e(s): out.append("  " + s)
def lab(s): out.append(s + ":")
def c(s): out.append("  ; " + s)

sX, sR, sW, sH, sJ = "s3", "s4", "s5", "s6", "s7"
SX, SWS, SA, SB, SC, SD, SE, SF, SO = (f"s[{i}:{i+3}]" for i in (8, 12, 16, 20, 24, 28, 32, 36, 40))
sTAG = "s44"
sPK0, sPK1, sPK2, sUP = "s50", "s51", "s52", "s53"
sM2 = "s[54:55]"
sCNT = "s56"
def stamp(k):
    if P["stamps"] and (P["smask"] >> k) & 1:
        e(f"s_{'memtime' if P['stamps'] == 4 else 'memrealtime'} s[{64+2*k}:{65+2*k}]")
def dump_stamps():
    if not P["stamps"]: return
    e("s_mov_b64 exec, -1")
    e("s_waitcnt lgkmcnt(0)")
    if P["stamps"] == 2:
        e("s_getreg_b32 s94, hwreg(HW_REG_HW_ID)")
    for k in range(16):
        e(f"v_writelane_b32 v250, s{64+2*k}, {k}")
    e("s_lshl_b32 s45, s2, 9")
    e(f"s_lshl_b32 s46, {sW}, 6")
    e("s_add_u32 s45, s45, s46")
    e(f"s_add_u32 s45, s45, {TS}")
    e("v_lshlrev_b32 v251, 2, v1")
    e("s_mov_b64 exec, 0xffff")
    e(f"buffer_store_dword v250, v251, {SWS}, s45 offen")

def srd(idx, nbytes):
    e(f"s_mov_b32 s{idx+2}, {nbytes}")
    e(f"s_mov_b32 s{idx+3}, 0x00020000")
def pack_granule(g, a):
    e(f"v_perm_b32 v{g}, v{a}, v{a+3}, {sPK0}")
    e(f"v_perm_b32 v{g+1}, v{a+1}, v{a+3}, {sPK1}")
    e(f"v_perm_b32 v{g+2}, v{a+2}, v{a+3}, {sPK2}")
    e(f"v_mov_b32 v{g+3}, {sTAG}")
def unpack_granule(g):
    e(f"v_perm_b32 v{g+3}, v{g+1}, v{g}, {sUP}")
    e(f"v_lshl_or_b32 v{g+3}, v{g+2}, 24, v{g+3}")
def halving_reduce(g):
    e("s_nop 1")
    e(f"v_permlane32_swap_b32 v{g}, v{g+2}")
    e(f"v_permlane32_swap_b32 v{g+1}, v{g+3}")
    e("s_nop 0")
    e(f"v_add_f32 v{g}, v{g}, v{g+2}")
    e(f"v_add_f32 v{g+1}, v{g+1}, v{g+3}")
    e("s_nop 1")
    e(f"v_permlane16_swap_b32 v{g}, v{g+1}")
    e("s_nop 0")
    e(f"v_add_f32 v{g}, v{g}, v{g+1}")
def dual_poll(name, dst, voff, sA, sB, first_extra=None, after_first="vmcnt(0)", lr=None, bo=0):
    lr = P["localrounds"] if lr is None else lr
    if lr == 0: sA = sB
    e(f"s_mov_b32 {sCNT}, 0")
    e(f"buffer_load_dwordx4 v[{dst}:{dst+3}], v{voff}, {SWS}, {sA} offen sc1")
    if first_extra: first_extra()
    e(f"s_waitcnt {after_first}")
    lab(f"L_{name}_chk")
    e(f"v_cmp_ne_u32 vcc, {sTAG}, v{dst+3}")
    e(f"s_cbranch_vccz L_{name}_ok")
    e(f"s_add_u32 {sCNT}, {sCNT}, 1")
    e(f"s_cmp_gt_u32 {sCNT}, {TMO}")
    e(f"s_cbranch_scc1 L_{name}_ok")
    if sA != sB:
        e(f"s_cmp_gt_u32 {sCNT}, {lr}")
        e(f"s_cselect_b32 s45, {sCNT}, 0")
        e("s_and_b32 s45, s45, 3")
        e("s_cmp_eq_u32 s45, 3")
        e(f"s_cselect_b32 s45, {sB}, {sA}")
    else:
        e(f"s_mov_b32 s45, {sA}")
    if bo: e(f"s_sleep {bo}")
    e(f"buffer_load_dwordx4 v[{dst}:{dst+3}], v{voff}, {SWS}, s45 offen sc1")
    e("s_waitcnt vmcnt(0)")
    e(f"s_branch L_{name}_chk")
    lab(f"L_{name}_ok")
def dual_poll4(name, dst, voffs, sA, sB, valid=None, lr=None, offs=(0, 0, 0, 0), first=None):
    lr = P["localrounds"] if lr is None else lr
    if lr == 0: sA = sB
    e(f"s_mov_b32 {sCNT}, 0")
    e(f"s_mov_b32 s45, {sA}")
    if first:
        for i in range(4):
            e(f"buffer_load_dwordx4 v[{dst+4*i}:{dst+4*i+3}], v{voffs[i]}, {SWS}, s45 offen offset:{offs[i]} sc1")
        n = first()
        e(f"s_waitcnt vmcnt({n})")
        e(f"s_branch L_{name}_chk")
    lab(f"L_{name}_ld")
    for i in range(4):
        e(f"buffer_load_dwordx4 v[{dst+4*i}:{dst+4*i+3}], v{voffs[i]}, {SWS}, s45 offen offset:{offs[i]} sc1")
    e(f"s_add_u32 {sCNT}, {sCNT}, 1")
    if sA != sB:
        e(f"s_cmp_gt_u32 {sCNT}, {lr}")
        e(f"s_cselect_b32 s45, {sCNT}, 0")
        e("s_and_b32 s45, s45, 3")
        e("s_cmp_eq_u32 s45, 3")
        e(f"s_cselect_b32 s45, {sB}, {sA}")
    else:
        e(f"s_mov_b32 s45, {sA}")
    e("s_waitcnt vmcnt(0)")
    lab(f"L_{name}_chk")
    t = dst + 16
    for i in range(4):
        e(f"v_xor_b32 v{t+i}, {sTAG}, v{dst+4*i+3}")
    e(f"v_or3_b32 v{t}, v{t}, v{t+1}, v{t+2}")
    e(f"v_or_b32 v{t}, v{t}, v{t+3}")
    e(f"v_cmp_ne_u32 vcc, 0, v{t}")
    if valid:
        e(f"s_and_b64 vcc, vcc, {valid}")
        e(f"s_cbranch_scc0 L_{name}_ok")
    else:
        e(f"s_cbranch_vccz L_{name}_ok")
    e(f"s_cmp_lt_u32 {sCNT}, {TMO}")
    e(f"s_cbranch_scc1 L_{name}_ld")
    lab(f"L_{name}_ok")
def sum4(dst):
    for i in range(4):
        unpack_granule(dst + 4*i)
    for k in range(4):
        e(f"v_add_f32 v{dst+k}, v{dst+k}, v{dst+4+k}")
        e(f"v_add_f32 v{dst+8+k}, v{dst+8+k}, v{dst+12+k}")
    for k in range(4):
        e(f"v_add_f32 v{dst+k}, v{dst+k}, v{dst+8+k}")
def sum4_reduce(dst):
    sum4(dst)
    halving_reduce(dst)
def mfma(d, a, b, cc):
    cs = "0" if cc is None else f"v[{cc}:{cc+3}]"
    e(f"v_mfma_f32_16x16x32_bf16 v[{d}:{d+3}], v[{a}:{a+3}], v[{b}:{b+3}], {cs}")
def dma(voff, srd_, soff, flags, off=0, shared=False):
    if flags == "nt" and not P["nt_ckv" if srd_ in (SD, SF) or shared else "nt"]: flags = ""
    o = f" offset:{off}" if off else ""
    e(f"buffer_load_dwordx4 v{voff}, {srd_}, {soff} offen{o} {flags} lds")
def row_allreduce16(op, v):
    for ctl in ("quad_perm:[1,0,3,2]", "quad_perm:[2,3,0,1]", "row_half_mirror", "row_mirror"):
        e("s_nop 1")
        e(f"v_{op}_f32_dpp v{v}, v{v}, v{v} {ctl} row_mask:0xf bank_mask:0xf")
def oct_reduce_u32(vs):
    for ctl in ("quad_perm:[1,0,3,2]", "quad_perm:[2,3,0,1]", "row_half_mirror"):
        e("s_nop 1" if len(vs) == 1 else "s_nop 0")
        for v in vs:
            e(f"v_add_u32_dpp v{v}, v{v}, v{v} {ctl} row_mask:0xf bank_mask:0xf")
def swap_reduce(op, v, t, which):
    e(f"v_mov_b32 v{t}, v{v}")
    e("s_nop 1")
    e(f"v_permlane{which}_swap_b32 v{v}, v{t}")
    e("s_nop 0")
    e(f"v_{op}_f32 v{v}, v{v}, v{t}")
def round_bf16(v):
    e(f"v_cvt_pk_bf16_f32 v{v}, v{v}, v{v}")
    e(f"v_lshlrev_b32 v{v}, 16, v{v}")
def tr(dst, addr, off):
    e(f"ds_read_b64_tr_b16 v[{dst}:{dst+1}], v{addr} offset:{off}")
def rd128(dst, addr, off):
    e(f"ds_read_b128 v[{dst}:{dst+3}], v{addr} offset:{off}")

hdr = open("cdna_kernels/" + NAME + ".s.ref").read().split("; Override launch")[0]
out.append(hdr.rstrip())
out.append(f"; @launch grid=(256,1,1) block=(512,1,1) lds={LDS_BYTES}")
out.append('.amdgcn_target "amdgcn-amd-amdhsa--gfx950"')
out.append(".text")
out.append("""; ------------------------------------------------------------------------------------------------
; One persistent launch, one workgroup per CU (x = id & 7, r = id >> 3).  Absorbed form of the attention:
; r >= 16 "attention CU" (16 heads x 128 keys): scores, softmax, P.V, then 64 output columns over a head pair
; the tag back.  Small vectors travel as 16-byte granules {3 x 24-bit-rounded floats carrying a 4th, tag}; Qa rows are
; marked empty first (flag) and recognised by content; O rows are checked against a checksum in their statistics
; write-through copy that the reader falls back to, so no placement is assumed.  Every wait is bounded.
; ------------------------------------------------------------------------------------------------""")
out.append(f".globl {KN}")
out.append(".p2align 8")
out.append(f".type {KN},@function")
lab(KN)
c("the first 256 bytes hold everything waves 0-3 of a weight CU need to start the w_q stream")
stamp(0)
if P["x_dbg"]: e("s_memrealtime s[64:65]")
for _ in range(P["x_startsleep"]): e("s_sleep 127")
e("s_load_dwordx2 s[16:17], s[0:1], 16")
e("s_load_dwordx2 s[8:9], s[0:1], 0")
e("s_getpc_b64 s[46:47]")
lab("L_pc")
e("v_lshlrev_b32 v5, 7, v0")
e("s_cmpk_ge_u32 s2, 0x100")
e("s_cbranch_scc1 L_end")
e("v_min_u32 v5, L_codeend-L_pc-4, v5")
e("v_lshrrev_b32 v4, 6, v0")
e("global_load_dword v252, v5, s[46:47]")
e(f"v_readfirstlane_b32 {sW}, v4")
e(f"s_lshr_b32 {sR}, s2, 3")
e(f"s_and_b32 {sX}, s2, {3 if P['xmap'] else 7}")
e("v_and_b32 v2, 15, v0")
e("v_bfe_u32 v3, v0, 4, 2")
if P["xmap"]: e("s_bitcmp1_b32 s2, 2")
else: e(f"s_cmp_ge_u32 {sR}, 16")
e("s_cbranch_scc1 L_A")
e(f"s_lshr_b32 s45, {sR}, 2")
e(f"s_lshl{3 if P['xmap'] else 2}_add_u32 {sH}, {sX}, s45")
e(f"s_and_b32 {sJ}, {sR}, 3")
e(f"s_and_b32 s58, {sW}, 3")
e(f"s_lshl2_add_u32 s45, {sJ}, s58")
e("s_lshl_b32 s45, s45, 18")
e(f"s_lshl_b32 s57, {sH}, 8")
e("s_add_u32 s57, s57, s45")
e("s_lshl_b32 s58, s58, 13")
e("v_lshlrev_b32 v4, 1, v3")
e("v_xor_b32 v4, v2, v4")
e("v_lshlrev_b32 v4, 4, v4")
e("v_lshl_add_u32 v10, v3, 13, v4")
if P["x_wc"]:
    e("v_and_b32 v10, 63, v0")
    e("v_lshlrev_b32 v10, 4, v10")
    e(f"s_lshl_b32 s57, {sH}, 2")
    e(f"s_add_u32 s57, s57, {sJ}")
    e("s_lshl_b32 s57, s57, 15")
    e("s_add_u32 s57, s57, s58")
e("v_lshlrev_b32 v5, 25, v0")
e("v_lshrrev_b32 v5, 21, v5")
e("s_lshl_b32 s18, 1, 22")
e("s_lshl_b32 s19, 1, 17")
e("s_mov_b32 m0, s58")
e("s_movk_i32 s48, 0x80")
e(f"s_lshl_b32 s49, 1, {10 if P['x_wc'] else 15}")
e("s_mov_b32 s47, 3")
e(f"s_cmp_gt_u32 {sW}, 3")
e("s_waitcnt lgkmcnt(0)")
e("global_load_dwordx4 v[20:23], v5, s[8:9]")
e("s_cbranch_scc1 L_w_hi")
if P["x_s2"]: e("s_branch L_w_hi")
lab("L_wq")
dma(10, SA, "s57", "nt")
e("s_addk_i32 m0, 0x400")
e("s_add_u32 s57, s57, s49")
dma(10, SA, "s57", "nt")
e("s_addk_i32 m0, 0x400")
e("s_add_u32 s57, s57, s49")
e("v_xor_b32 v10, s48, v10")
e("s_sub_u32 s47, s47, 1")
e("s_cbranch_scc0 L_wq")
e(f"s_sub_u32 s57, s57, {0x2000 if P['x_wc'] else 0x40000}")
lab("L_w_hi")
stamp(1)
c("================= weight CU: head h = 4x + (r>>2), quarter j = r&3 =================")
if P["xmap"]:
    e(f"s_lshr_b32 {sX}, {sH}, 2")
    e(f"s_and_b32 {sR}, {sR}, 15")
e("s_load_dwordx2 s[12:13], s[0:1], 88")
e("s_load_dwordx2 s[20:21], s[0:1], 24")
e("s_load_dwordx2 s[24:25], s[0:1], 32")
e("s_load_dwordx2 s[32:33], s[0:1], 56")
WPF = P["w_pf"] in (1, 3) or P["pf_split"]
if WPF:
    e("s_load_dwordx2 s[28:29], s[0:1], 40")
    e("s_load_dwordx2 s[36:37], s[0:1], 64")
if P["w_ckv"]: e("s_load_dwordx2 s[40:41], s[0:1], 8")
srd(12, WS_BYTES); srd(20, 4194304)
e("v_and_b32 v1, 63, v0")
e("v_mov_b32 v7, 0")
e("v_lshlrev_b32 v8, 4, v1")
e("v_xor_b32 v4, v2, v3")
e("v_lshlrev_b32 v4, 4, v4")
e("v_lshl_add_u32 v12, v3, 13, v4")
e("v_xor_b32 v13, 0x40, v12")
e("v_xor_b32 v14, 0x80, v12")
e("v_xor_b32 v15, 0xc0, v12")
e(f"s_lshl_b32 s59, {sX}, 4")
e(f"s_add_u32 s59, s59, {sR}")
e("v_lshlrev_b32 v9, 15, v3")
e("v_lshl_add_u32 v9, v2, 4, v9")
e("s_lshl_b32 s60, s59, 8")
e(f"s_add_u32 s60, s60, {QA}")
e("s_lshl_b32 s62, s59, 10")
e(f"s_add_u32 s45, s62, {QPA}")
e("v_lshlrev_b32 v28, 7, v1")
e("v_mov_b32 v24, -1")
e("v_mov_b32 v25, -1")
e("v_mov_b32 v26, -1")
e("v_mov_b32 v27, -1")
e("s_waitcnt lgkmcnt(0)")
e(f"s_load_dword {sTAG}, s[12:13], 0")
e(f"s_cmp_lg_u32 {sW}, 0")
e("s_cbranch_scc1 L_w_norst")
e("s_mov_b64 exec, 0xff")
e(f"buffer_load_dword v29, v28, {SWS}, s45 offen sc1")
e("s_mov_b32 exec_lo, -1")
e(f"buffer_store_dwordx4 v[24:27], v9, {SWS}, s60 offen sc1")
e("s_mov_b64 exec, -1")
lab("L_w_norst")
e(f"s_cmp_lt_u32 {sW}, 4")
e("s_cbranch_scc1 L_w_lo")
for i in range(0 if P["x_s2"] else 8):
    e(f"s_add_u32 m0, s58, {R1 + i*1024}")
    e(f"s_add_u32 s45, s57, {i*(1024 if P['x_wc'] else 32768)}")
    dma(10 if P["x_wc"] else 12 + (i & 3), SB, "s45", "nt")
lab("L_w_lo")
srd(24, 4194304); srd(32, 1409024)
if WPF: srd(28, 4194304); srd(36, 1409024)
def consts():
    e(f"s_mov_b32 {sPK0}, 0x07060501")
    e(f"s_mov_b32 {sPK1}, 0x07060502")
    e(f"s_mov_b32 {sPK2}, 0x07060503")
    e(f"s_mov_b32 {sUP}, 0x0c04000c")
    e("s_mov_b32 s54, 0x00030003")
    e("s_mov_b32 s55, 0x00030003")
consts()
if P["w_ckv"]:
    srd(40, 8388608)
    e(f"s_lshl_b32 s99, {sX}, 20")
    e(f"s_lshr_b32 s45, {sR}, 1")
    e("s_lshl_b32 s45, s45, 17")
    e("s_add_u32 s99, s99, s45")
    e(f"s_and_b32 s45, {sR}, 1")
    e("s_lshl_b32 s45, s45, 15")
    e("s_add_u32 s99, s99, s45")
    e("s_add_u32 s99, s99, s58")
    e("s_add_u32 s99, s99, 0x10000")
def ckv_pf():
    e(f"buffer_load_dword v29, v28, {SO}, s99 offen {'nt' if P['nt_ckv'] else ''}")
c("LDS / hand-off addresses")
e("v_lshrrev_b32 v4, 2, v2")
e("v_and_b32 v5, 3, v2")
e("v_and_b32 v30, 1, v3")
e("v_lshl_or_b32 v30, v30, 2, v4")
e(f"v_xor_b32 v30, {sW}, v30")
e("v_lshlrev_b32 v30, 5, v30")
e("v_lshl_add_u32 v30, v5, 3, v30")
e("v_lshl_add_u32 v31, v3, 3, v4")
e("v_lshl_add_u32 v16, v31, 8, v30")
e("v_and_b32 v32, 1, v2")
e(f"v_mul_u32_u24 v17, {XNS}, v32")
e(f"s_lshl_b32 s45, {sJ}, 8")
e("v_lshl_add_u32 v18, v3, 4, v17")
e("v_add_u32 v18, s45, v18")
e(f"v_mul_u32_u24 v19, {QLS}, v32")
e("v_lshl_add_u32 v33, v3, 4, v19")
e("v_lshlrev_b32 v34, 5, v3")
e("v_lshl_add_u32 v34, v2, 4, v34")
e("v_lshrrev_b32 v36, 1, v1")
e("v_lshl_add_u32 v37, v36, 3, v19")
e("v_xor_b32 v40, v2, v3")
e("v_lshlrev_b32 v40, 4, v40")
e("v_lshl_add_u32 v40, v2, 8, v40")
e(f"s_lshl_b32 s45, {sW}, 12")
e("v_add_u32 v40, s45, v40")
e("v_xor_b32 v41, 0x40, v40")
e("v_xor_b32 v42, 0x80, v40")
e("v_xor_b32 v43, 0xc0, v40")
e(f"s_lshl_b32 s45, {sW}, 5")
e("v_lshl_add_u32 v39, v3, 3, s45")
e("v_lshl_add_u32 v44, v2, 8, v39")
e("v_add_u32 v45, v19, v39")
e(f"s_lshl_b32 s45, {sW}, 7")
e("s_add_u32 s62, s62, s45")
e(f"s_lshl_b32 s61, {sH}, 12")
e(f"s_add_u32 s63, s61, {QPB}")
e(f"s_add_u32 s61, s61, {QPA}")
e(f"s_add_u32 s48, s62, {QPA}")
e(f"s_add_u32 s49, s62, {QPB}")
e(f"s_cmp_gt_u32 {sW}, 3")
e("s_cbranch_scc1 L_w_lnend")
c("wave 1 clears the weight table and the retry flag")
e(f"s_cmp_lg_u32 {sW}, 1")
e("s_cbranch_scc1 L_w_noinit")
e("v_lshlrev_b32 v46, 2, v1")
e(f"ds_write_b32 v46, v7 offset:{WT}")
e(f"ds_write_b32 v46, v7 offset:{WT+256}")
lab("L_w_noinit")
e(f"s_cmp_lt_u32 {sW}, 2")
e("s_cbranch_scc1 L_w_noln")
e("s_waitcnt vmcnt(8)")
c("layer norm of row w&1 (bf16 rounding after every step, as the reference does)")
for k in range(4):
    e(f"v_lshlrev_b32 v{48+2*k}, 16, v{20+k}")
    e(f"v_and_b32 v{49+2*k}, 0xffff0000, v{20+k}")
e("v_add_f32 v56, v48, v49")
e("v_add_f32 v57, v50, v51")
e("v_add_f32 v58, v52, v53")
e("v_add_f32 v59, v54, v55")
e("v_add_f32 v56, v56, v57")
e("v_add_f32 v58, v58, v59")
e("v_add_f32 v56, v56, v58")
row_allreduce16("add", 56)
swap_reduce("add", 56, 57, 16)
swap_reduce("add", 56, 57, 32)
e("v_mul_f32 v56, 0x3b000000, v56")
for k in range(8):
    e(f"v_sub_f32 v{60+k}, v{48+k}, v56")
e("v_mul_f32 v57, v60, v60")
for k in range(1, 8):
    e(f"v_fmac_f32 v57, v{60+k}, v{60+k}")
row_allreduce16("add", 57)
swap_reduce("add", 57, 58, 16)
swap_reduce("add", 57, 58, 32)
e("v_mul_f32 v57, 0x3b000000, v57")
round_bf16(56)
round_bf16(57)
e("v_add_f32 v57, 0x3727c5ac, v57")
round_bf16(57)
e("v_sqrt_f32 v57, v57")
e("s_nop 0")
round_bf16(57)
e("v_rcp_f32 v57, v57")
for k in range(8):
    e(f"v_sub_f32 v{60+k}, v{48+k}, v56")
for k in range(4):
    e(f"v_cvt_pk_bf16_f32 v{48+k}, v{60+2*k}, v{61+2*k}")
for k in range(4):
    e(f"v_lshlrev_b32 v{60+2*k}, 16, v{48+k}")
    e(f"v_and_b32 v{61+2*k}, 0xffff0000, v{48+k}")
for k in range(8):
    e(f"v_mul_f32 v{60+k}, v{60+k}, v57")
for k in range(4):
    e(f"v_cvt_pk_bf16_f32 v{48+k}, v{60+2*k}, v{61+2*k}")
e(f"s_and_b32 s45, {sW}, 1")
e(f"s_mul_i32 s45, s45, {XNS}")
e("v_add_u32 v56, s45, v8")
e(f"ds_write_b128 v56, v[48:51] offset:{XN}")
lab("L_w_noln")
e(f"s_cmp_eq_u32 {sW}, 0")
e("s_cbranch_scc1 L_w_w0")
e("s_waitcnt vmcnt(0)")
lab("L_w_w0")
e("s_waitcnt vmcnt(2)")
lab("L_w_lnend")
e("s_waitcnt lgkmcnt(0)")
e(f"s_add_u32 {sTAG}, {sTAG}, 1")
stamp(2)
if P["x_s2"]:
    e("s_waitcnt vmcnt(0)")
    e("s_barrier")
    e("s_branch L_w_noqa")
if P["x_exit"] == 1:
    e("s_waitcnt vmcnt(0)")
    stamp(3)
    e("s_branch L_w_fin")
e("s_barrier")
c("P1a: partial q over my m quarter, d tile w")
for s in range(4):
    rd128(56 + 4*s, 18, XN + s*64)
    tr(72 + 4*s, 16, R0 + s*8192)
    tr(74 + 4*s, 16, R0 + s*8192 + 1024)
for s in range(4):
    e(f"s_waitcnt lgkmcnt({9 - 3*s})")
    mfma(88, 72 + 4*s, 56 + 4*s, None if s == 0 else 88)
e("s_nop 7")
pack_granule(92, 88)
e(f"s_mov_b64 exec, {sM2}")
if not P["x_noloc"]: e(f"buffer_store_dwordx4 v[92:95], v34, {SWS}, s48 offen")
e(f"buffer_store_dwordx4 v[92:95], v34, {SWS}, s49 offen sc1")
stamp(3)
e(f"s_cmp_gt_u32 {sW}, 3")
e("s_cbranch_scc1 L_w_h0")
if P["w_ckv"] in (2, 3):
    e("s_mov_b64 exec, -1")
    if P["w_ckv"] == 3:
        e(f"s_cmp_lt_u32 {sW}, 2")
        e("s_cbranch_scc1 L_w_ck2")
    ckv_pf()
    lab("L_w_ck2")
e(f"s_cmp_lg_u32 {sW}, 0")
e("s_cbranch_scc1 L_w_h0done")
e("s_lshl_b32 s45, s59, 7")
e(f"s_add_u32 s45, s45, {FLG}")
e(f"v_mov_b32 v6, {sTAG}")
e("s_mov_b64 exec, 1")
e(f"s_waitcnt vmcnt({(1 if P['x_noloc'] else 2) + (P['w_ckv'] == 2)})")
e(f"buffer_store_dword v6, v7, {SWS}, s45 offen sc1")
e("s_branch L_w_h0done")
lab("L_w_h0")
e("s_mov_b64 exec, -1")
e(f"s_cmp_eq_u32 {sW}, 7")
e("s_cbranch_scc1 L_w_h0p")
e(f"s_waitcnt vmcnt({1 if P['x_noloc'] else 2})")
e("s_branch L_w_h0done")
lab("L_w_h0p")
e(f"s_waitcnt vmcnt({(1 if P['x_noloc'] else 2) + P['h0_k']})")
def ckv_pf4():
    e("s_sub_u32 s99, s99, s58")
    for k in range(4):
        ckv_pf()
        if k < 3: e("s_add_u32 s99, s99, 8192")
    return 4
dual_poll4("h0", 96, [8, 8, 8, 8], "s61", "s63", offs=(0, 1024, 2048, 3072), first=ckv_pf4 if P["w_ckv"] == 4 else None)
stamp(4)
sum4(96)
e("v_cvt_pk_bf16_f32 v96, v96, v97")
e("v_cvt_pk_bf16_f32 v97, v98, v99")
e(f"ds_write_b64 v37, v[96:97] offset:{QL}")
lab("L_w_h0done")
e("s_mov_b64 exec, -1")
e("s_waitcnt lgkmcnt(0)")
e("s_barrier")
c("P1b: absorbed query for my c quarter, c tile w")
for s in range(4):
    rd128(56 + 4*s, 33, QL + s*64)
    rd128(72 + 4*s, 40 + s, R1)
if P["w_ckv"] in (1, 3):
    e(f"s_cmp_lt_u32 {sW}, 4")
    e("s_cbranch_scc1 L_w_nockv")
    if P["w_ckv"] == 3:
        e(f"s_cmp_gt_u32 {sW}, 5")
        e("s_cbranch_scc1 L_w_nockv")
    ckv_pf()
    lab("L_w_nockv")
for s in range(4):
    e(f"s_waitcnt lgkmcnt({6 - 2*s})")
    mfma(88, 72 + 4*s, 56 + 4*s, None if s == 0 else 88)
e("s_nop 7")
e("v_cvt_pk_bf16_f32 v92, v88, v89")
e("v_cvt_pk_bf16_f32 v93, v90, v91")
e(f"s_mov_b64 exec, {sM2}")
e(f"ds_write_b64 v44, v[92:93] offset:{QST}")
e("s_mov_b64 exec, -1")
e("s_waitcnt lgkmcnt(0)")
e("s_barrier")
e(f"s_cmp_lg_u32 {sW}, 0")
e("s_cbranch_scc1 L_w_noqa")
e("s_mov_b32 exec_hi, 0")
rd128(92, 8, QST)
e("s_waitcnt lgkmcnt(0)")
e(f"buffer_store_dwordx4 v[92:95], v9, {SWS}, s60 offen sc1")
e("s_mov_b64 exec, -1")
if P["w_ckv"] == 5: ckv_pf4()
lab("L_w_noqa")
stamp(5)
if P["x_exit"] == 2: e("s_branch L_w_fin")
c("second stream: waves 0-3 w_uv, waves 4-7 w1")
def wthr():
    if P["w_win"] < 63: e(f"s_waitcnt vmcnt({P['w_win']})")
def t0x(dst):
    e(f"s_mul_i32 {dst}, {sX}, 11")
    e(f"s_sub_u32 s45, {sX}, 6")
    e("s_max_i32 s45, s45, 0")
    e(f"s_sub_u32 {dst}, {dst}, s45")
e("s_lshl_b32 s98, s59, 11")
e(f"s_add_u32 s98, s98, {HPA}")
if P["s2_gate"]:
    c("pacing only: let the c_kv stream of this group finish first")
    e(f"s_cmp_lg_u32 {sW}, 1")
    e("s_cbranch_scc1 L_w_gate")
    e(f"s_lshl_b32 s45, {sX}, 7")
    e(f"s_add_u32 s45, s45, {CKF}")
    e("v_lshlrev_b32 v46, 2, v2")
    e(f"s_mov_b32 {sCNT}, 0")
    lab("L_w_gl")
    e(f"buffer_load_dword v47, v46, {SWS}, s45 offen sc1")
    e(f"s_add_u32 {sCNT}, {sCNT}, 1")
    e("s_waitcnt vmcnt(0)")
    e(f"v_cmp_ne_u32 vcc, {sTAG}, v47")
    e("s_cbranch_vccz L_w_gate")
    e(f"s_cmp_lt_u32 {sCNT}, {P['s2_gate']}")
    e("s_cbranch_scc1 L_w_gl")
    lab("L_w_gate")
    e("s_barrier")
if P["w_nat"]:
    c("c_kv first: the second weight stream starts when my share of it is in L2")
    e("s_waitcnt vmcnt(0)")
    e("s_barrier")
if P["w2_delay"]: e(f"s_sleep {P['w2_delay']}")
e(f"s_cmp_gt_u32 {sW}, 3")
e("s_cbranch_scc1 L_w_s2hi")
e("v_xor_b32 v11, 0x80, v10")
for i in range(0 if P["x_s2"] & 2 else 8):
    e(f"s_add_u32 m0, s58, {R0 + i*1024}")
    e(f"s_add_u32 s45, s57, {i*32768}")
    dma(10 + ((i >> 1) & 1), SC, "s45", "nt")
    wthr()
e("s_branch L_w_s2done")
lab("L_w_s2hi")
e(f"s_cmp_lg_u32 {sW}, 6")
e("s_cbranch_scc1 L_w_nopre")
e("s_lshl_b32 s45, s59, 10")
e(f"s_add_u32 s45, s45, {CPA}")
e("s_mov_b64 exec, 0xff")
e(f"buffer_load_dword v29, v28, {SWS}, s45 offen sc1")
e("s_mov_b64 exec, 0xfff")
e(f"buffer_load_dword v29, v28, {SWS}, s98 offen sc1")
e("s_mov_b64 exec, -1")
if P["w_slow"]:
    e("v_and_b32 v46, 31, v1")
    e("v_lshlrev_b32 v46, 13, v46")
    e("v_lshrrev_b32 v47, 5, v1")
    e("v_lshl_add_u32 v46, v47, 7, v46")
    e(f"s_lshl_b32 s45, {sR}, 18")
    e(f"s_lshl_b32 s47, {sX}, 10")
    e("s_add_u32 s45, s45, s47")
    e(f"buffer_load_dword v29, v46, {SC}, s45 offen offset:256")
lab("L_w_nopre")
t0x("s46")
e(f"s_mul_i32 s45, {sR}, {32*2752}")
e("s_lshl_b32 s48, s46, 5")
e("s_add_u32 s45, s45, s48")
e("s_lshr_b32 s48, s58, 7")
e("v_add_u32 v46, s48, v1")
e("s_movk_i32 s47, 2400")
e("s_lshr_b32 s48, s58, 3")
for i in range(0 if P["x_s2"] & 4 else 3):
    if i == 2:
        e(f"s_cmp_eq_u32 {sW}, 7")
        e("s_cbranch_scc1 L_w_w1done")
    e("v_mul_u32_u24 v47, 2979, v46")
    e("v_lshrrev_b32 v47, 16, v47")
    e("v_lshlrev_b32 v48, 4, v46")
    e("v_mad_u32_u24 v47, v47, s47, v48")
    e(f"s_add_u32 m0, s48, {W1L + i*4096}")
    e("v_add_u32 v46, 0x100, v46")
    dma(47, SE, "s45", "nt")
    wthr()
lab("L_w_w1done")
def wo_pf(done):
    c("pull a contiguous 1/16 of this XCD group's w_o / w2 rows into L2 (one lane per 128-B line)")
    e(f"s_lshl_b32 s45, {sX}, 19")
    e(f"s_lshl_b32 s48, {sR}, 15")
    e("s_add_u32 s45, s45, s48")
    e("s_add_u32 s45, s45, s58")
    if not P["x_s2"] & 8: e(f"buffer_load_dword v29, v28, {SD}, s45 offen {'nt' if P['pf_nt'] else ''}")
    e(f"s_cmp_gt_u32 {sW}, 5")
    e(f"s_cbranch_scc1 {done}")
    e("s_lshl_b32 s45, s46, 14")
    e(f"s_mul_i32 s48, {sR}, 12288")
    e("s_add_u32 s45, s45, s48")
    e("s_add_u32 s45, s45, s58")
    e(f"s_cmp_eq_u32 {sW}, 5")
    e("s_cselect_b32 exec_hi, 0, -1")
    if not P["x_s2"] & 16: e(f"buffer_load_dword v29, v28, {SF}, s45 offen {'nt' if P['pf_nt'] else ''}")
    e("s_mov_b64 exec, -1")
if P["w_pf"] == 1: wo_pf("L_w_s2done")
lab("L_w_s2done")
e(f"v_add_u32 v53, {OIN}, v16")
e("v_lshrrev_b32 v51, 3, v0")
e("v_and_b32 v50, 7, v0")
e("v_lshlrev_b32 v50, 4, v50")
e("v_lshl_add_u32 v50, v51, 8, v50")
e(f"v_add_u32 v50, {OIN}, v50")
e("v_lshlrev_b32 v51, 2, v51")
e(f"v_mul_u32_u24 v54, {WTS}, v32")
e("v_lshl_add_u32 v54, v3, 4, v54")
e("v_lshlrev_b32 v55, 1, v3")
e("v_xor_b32 v55, v2, v55")
e(f"s_and_b32 s45, {sW}, 1")
e("s_lshl_b32 s45, s45, 3")
e("v_xor_b32 v55, s45, v55")
e("v_lshlrev_b32 v55, 4, v55")
e("v_lshl_add_u32 v55, v3, 8, v55")
e("s_lshl_b32 s101, s59, 14")
e(f"s_lshl_b32 s45, {sW}, 11")
e("s_add_u32 s101, s101, s45")
e(f"s_add_u32 s101, s101, {OP}")
e(f"s_add_u32 s57, s45, {OIN}")
c("FFN first layer: partial sums over my 32 rows of w1, tiles w and w+8")
e("v_lshl_add_u32 v64, v3, 2, v4")
e("v_mul_u32_u24 v64, 352, v64")
e("v_lshl_add_u32 v64, v5, 3, v64")
e(f"s_lshl_b32 s48, {sW}, 5")
e(f"s_add_u32 s48, s48, {W1L}")
e("v_add_u32 v64, s48, v64")
e(f"s_lshl_b32 s48, {sR}, 6")
e("v_lshl_add_u32 v65, v3, 3, v17")
e("v_add_u32 v65, s48, v65")
e(f"s_lshl_b32 s48, {sW}, 7")
e("s_add_u32 s48, s48, s98")
e(f"s_add_u32 s49, s48, {HPB-HPA}")
if P["ffn_early"]:
    e(f"s_cmp_lt_u32 {sW}, 4")
    e("s_cbranch_scc1 L_w_w1in")
e("s_waitcnt vmcnt(0)")
if not P["ffn_early"]: stamp(6)
lab("L_w_w1in")
if P["x_s2"] or P["x_exit"] == 3: e("s_branch L_w_fin")
e("s_barrier")
e(f"ds_read_b64 v[56:57], v65 offset:{XN}")
e(f"ds_read_b64 v[58:59], v65 offset:{XN+32}")
tr(72, 64, 0); tr(74, 64, 5632)
tr(76, 64, 256); tr(78, 64, 5632 + 256)
e("s_waitcnt lgkmcnt(2)")
mfma(88, 72, 56, None)
e("s_waitcnt lgkmcnt(0)")
mfma(84, 76, 56, None)
e("s_nop 6")
pack_granule(92, 88)
e(f"s_mov_b64 exec, {sM2}")
if not P["x_noloc"]: e(f"buffer_store_dwordx4 v[92:95], v34, {SWS}, s48 offen")
e(f"buffer_store_dwordx4 v[92:95], v34, {SWS}, s49 offen sc1")
e(f"s_cmp_gt_u32 {sW}, 2")
e("s_cbranch_scc1 L_w_ffn1done")
pack_granule(80, 84)
if not P["x_noloc"]: e(f"buffer_store_dwordx4 v[80:83], v34, {SWS}, s48 offen offset:1024")
e(f"buffer_store_dwordx4 v[80:83], v34, {SWS}, s49 offen offset:1024 sc1")
lab("L_w_ffn1done")
e("s_mov_b64 exec, -1")
if P["w_pf"] == 3:
    e(f"s_cmp_lt_u32 {sW}, 4")
    e("s_cbranch_scc1 L_w_pfdone")
    wo_pf("L_w_pfdone")
    lab("L_w_pfdone")
if P["o_pre"]:
    e(f"s_cmp_gt_u32 {sW}, 1")
    e("s_cbranch_scc1 L_w_nopre2")
    e("s_lshl_b32 s45, s59, 14")
    e(f"s_lshl_b32 s46, {sW}, 13")
    e("s_add_u32 s45, s45, s46")
    e(f"s_add_u32 s45, s45, {OP}")
    e(f"buffer_load_dword v29, v28, {SWS}, s45 offen sc1")
    lab("L_w_nopre2")
if P["ffn_early"]:
    e(f"s_cmp_eq_u32 {sW}, 3")
    e("s_cbranch_scc1 L_w_uv2")
    e("s_waitcnt vmcnt(4)")
    e("s_branch L_w_uvin")
    lab("L_w_uv2")
    e("s_waitcnt vmcnt(2)")
    lab("L_w_uvin")
    stamp(6)
    e("s_barrier")
if P["pf_split"]:
    e(f"s_cmp_lt_u32 {sW}, 4")
    e("s_cbranch_scc1 L_w_pfdone")
    e(f"s_cmp_gt_u32 {sW}, 5")
    e("s_cbranch_scc1 L_w_pfo")
    e("s_lshl_b32 s45, s46, 14")
    e(f"s_mul_i32 s48, {sR}, 12288")
    e("s_add_u32 s45, s45, s48")
    e(f"s_and_b32 s48, {sW}, 1")
    e("s_mul_i32 s48, s48, 6144")
    e("s_add_u32 s45, s45, s48")
    e(f"buffer_load_dword v29, v28, {SF}, s45 offen")
    e("s_branch L_w_pfdone")
    lab("L_w_pfo")
    e(f"s_cmp_lt_u32 {sW}, {(8, 8, 7, 6)[P['pf_split']]}")
    e("s_cbranch_scc1 L_w_pfdone")
    e(f"s_lshl_b32 s45, {sX}, 19")
    e(f"s_lshl_b32 s48, {sR}, 15")
    e("s_add_u32 s45, s45, s48")
    e("s_add_u32 s45, s45, s58")
    e(f"buffer_load_dword v29, v28, {SD}, s45 offen")
    lab("L_w_pfdone")
c("weight fragments into registers")
for s in range(4):
    tr(96 + 4*s, 16, R0 + s*8192)
    tr(98 + 4*s, 16, R0 + s*8192 + 1024)
if P["h2w"]:
    ML = XN + 5760
    e(f"s_lshr_b32 s45, {sH}, 4")
    e("s_lshl_b32 s45, s45, 16")
    if P["st_x"]:
        e(f"s_and_b32 s46, {sX}, 3")
        e("s_lshl_b32 s46, s46, 8")
        e("s_add_u32 s48, s45, s46")
        e(f"s_lshl_b32 s46, {sJ}, 6")
        e("s_add_u32 s48, s48, s46")
        e(f"s_and_b32 s46, {sH}, 3")
        e("s_lshl_b32 s46, s46, 4")
        e("s_add_u32 s48, s48, s46")
    else:
        e(f"s_and_b32 s46, {sH}, 15")
        e("s_lshl_b32 s46, s46, 4")
        e("s_add_u32 s48, s45, s46")
        e(f"s_lshl_b32 s46, {sJ}, 8")
        e("s_add_u32 s48, s48, s46")
    e(f"s_add_u32 s99, s48, {ST}")
    e("v_lshlrev_b32 v62, 8, v51")
    if P["o_swz"]:
        e(f"s_lshl_b32 s45, {sJ}, 1")
        e(f"s_xor_b32 s45, s45, {sH}")
        e("s_and_b32 s45, s45, 7")
        e("s_lshl_b32 s45, s45, 10")
        e("v_xor_b32 v62, s45, v62")
    e("v_lshlrev_b32 v63, 1, v51")
    e("v_mov_b32 v68, 1")
    e("s_mov_b32 s58, 1")
    e("s_mov_b32 m0, s57")
    c("statistics of the 8 key splits (one XCD group) whose rows this wave fetches")
    stamp(7)
    if P["hint"]:
        c("a line that is read before it is written slows the write down: back off until the producers are about done")
        e(f"s_lshr_b32 s46, {sH}, 4")
        e("s_lshl_b32 s46, s46, 13")
        e(f"s_add_u32 s46, s46, {HINT}")
        e("v_lshlrev_b32 v60, 5, v51")
        e(f"s_mov_b32 {sCNT}, 0")
        lab("L_hint")
        e(f"buffer_load_dword v61, v60, {SWS}, s46 offen sc1")
        e(f"s_add_u32 {sCNT}, {sCNT}, 1")
        e("s_waitcnt vmcnt(0)")
        e(f"v_cmp_ne_u32 vcc, {sTAG}, v61")
        e("s_cbranch_vccz L_hint_ok")
        e(f"s_cmp_lt_u32 {sCNT}, {TMO}")
        e("s_cbranch_scc1 L_hint")
        lab("L_hint_ok")
        stamp(12)
        e(f"s_cmp_eq_u32 {sCNT}, 1")
        e("s_cbranch_scc1 L_hint_go")
        e(f"s_sleep {P['hint_d']}")
        lab("L_hint_go")
    if P["hint"] and P["hint_spec"]:
        e(f"buffer_load_dwordx4 v[56:59], v62, {SWS}, s99 offen sc1")
        dma(55, SWS, "s101", "sc1")
        dma(55, SWS, "s101", "sc1", 1024)
        e("s_waitcnt vmcnt(2)")
        e(f"v_cmp_ne_u32 vcc, {sTAG}, v59")
        e("s_cbranch_vccz L_st_in")
    dual_poll("st", 56, 62, "s99", "s99", bo=P["bo_st"])
    dma(55, SWS, "s101", "sc1")
    dma(55, SWS, "s101", "sc1", 1024)
    lab("L_st_in")
    stamp(8)
    e(f"ds_write_b64 v63, v[56:57] offset:{ML}")
    e("s_mov_b64 exec, 1")
    e(f"ds_add_rtn_u32 v69, v7, v68 offset:{FLAGL + 4}")
    e("s_mov_b64 exec, -1")
    e("v_lshlrev_b32 v63, 3, v1")
    e(f"ds_read_b64 v[64:65], v63 offset:{ML}")
    e("s_waitcnt lgkmcnt(0)")
    e("v_readfirstlane_b32 s45, v69")
    e("s_nop 1")
    e("s_cmp_lg_u32 s45, 7")
    e("s_cbranch_scc1 L_w_owait")
    c("the wave that is last: split weights exp2(m - M) / L per batch (lanes 0-31 / 32-63)")
    e("v_mov_b32 v60, v64")
    row_allreduce16("max", 60)
    swap_reduce("max", 60, 61, 16)
    e("v_sub_f32 v60, v64, v60")
    e("v_exp_f32 v60, v60")
    e("s_nop 0")
    e("v_mul_f32 v61, v60, v65")
    row_allreduce16("add", 61)
    swap_reduce("add", 61, 63, 16)
    e("v_rcp_f32 v61, v61")
    e("v_lshrrev_b32 v63, 5, v1")
    e(f"v_mul_u32_u24 v63, {WTS}, v63")
    e("v_mul_f32 v60, v60, v61")
    e("v_lshl_add_u32 v63, v1, 1, v63")
    e("v_cvt_pk_bf16_f32 v60, v60, v60")
    e(f"ds_write_b16 v63, v60 offset:{WT}")
    e("s_branch L_w_owait")
    lab("L_w_oretry")
    e("s_add_u32 s58, s58, 1")
    dma(55, SWS, "s101", "sc1")
    dma(55, SWS, "s101", "sc1", 1024)
    lab("L_w_owait")
    e("s_waitcnt vmcnt(0) lgkmcnt(0)")
    stamp(9)
    e("s_barrier")
    c("combine the 2x32 key splits for c tile w; check my rows against their checksums")
    for kk in range(2):
        rd128(60 + 4*kk, 54, WT + kk*64)
        tr(72 + 4*kk, 53, kk*8192)
        tr(74 + 4*kk, 53, kk*8192 + 1024)
    rd128(80, 50, 0)
    rd128(84, 50, 128)
    e("s_waitcnt lgkmcnt(5)")
    mfma(88, 72, 60, None)
    e("s_waitcnt lgkmcnt(2)")
    mfma(88, 76, 64, 88)
    e("v_mov_b32 v68, s58")
    e("s_waitcnt lgkmcnt(0)")
    e("v_add3_u32 v80, v80, v81, v82")
    e("v_add3_u32 v84, v84, v85, v86")
    e("v_add3_u32 v80, v80, v83, v87")
    e("v_add_u32 v80, v80, v84")
    e("s_nop 1")
    e("v_add_u32_dpp v80, v80, v80 quad_perm:[1,0,3,2] row_mask:0xf bank_mask:0xf")
    e("v_cvt_pk_bf16_f32 v92, v88, v89")
    e("v_cvt_pk_bf16_f32 v93, v90, v91")
    e("v_add_u32_dpp v80, v80, v80 quad_perm:[2,3,0,1] row_mask:0xf bank_mask:0xf")
    e(f"s_mov_b64 exec, {sM2}")
    e(f"ds_write_b64 v45, v[92:93] offset:{QL}")
    e("s_mov_b64 exec, -1")
    e("v_add_u32_dpp v80, v80, v80 row_half_mirror row_mask:0xf bank_mask:0xf")
    e("s_nop 0")
    e("v_cmp_ne_u32 vcc, v80, v58")
    e("s_and_b64 exec, exec, vcc")
    e("s_cbranch_execz L_w_onan")
    e(f"ds_max_u32 v7, v68 offset:{FLAGL}")
else:
    e(f"s_cmp_lg_u32 {sW}, 7")
    e("s_cbranch_scc1 L_w_nopoll")
    c("wave 7: wait for the 64 softmax statistics of my head")
    e(f"s_lshr_b32 s45, {sH}, 4")
    e("s_lshl_b32 s45, s45, 16")
    e(f"s_and_b32 s46, {sH}, 15")
    e("s_lshl_b32 s46, s46, 4")
    e("s_add_u32 s48, s45, s46")
    e(f"s_lshl_b32 s46, {sJ}, 8")
    e("s_add_u32 s48, s48, s46")
    e(f"s_add_u32 s48, s48, {ST}")
    e("v_lshlrev_b32 v62, 10, v1")
    stamp(7)
    dual_poll("st", 56, 62, "s48", "s48")
    stamp(8)
    def split_weights():
        c("split weights: exp2(m - M) / L per batch (lanes 0-31 / 32-63)")
        e("v_mov_b32 v60, v56")
        row_allreduce16("max", 60)
        swap_reduce("max", 60, 61, 16)
        e("v_sub_f32 v60, v56, v60")
        e("v_exp_f32 v60, v60")
        e("s_nop 0")
        e("v_mul_f32 v61, v60, v57")
        row_allreduce16("add", 61)
        swap_reduce("add", 61, 63, 16)
        e("v_rcp_f32 v61, v61")
        e("v_lshrrev_b32 v63, 5, v1")
        e(f"v_mul_u32_u24 v63, {WTS}, v63")
        e("v_mul_f32 v60, v60, v61")
        e("v_lshl_add_u32 v63, v1, 1, v63")
        e("v_cvt_pk_bf16_f32 v60, v60, v60")
        e(f"ds_write_b16 v63, v60 offset:{WT}")
    lab("L_w_nopoll")
    e("s_mov_b32 s58, 0")
    e("s_waitcnt lgkmcnt(0)")
    e("s_barrier")
    lab("L_w_oretry")
    e("s_add_u32 s58, s58, 1")
    e("s_mov_b32 m0, s57")
    e("s_nop 0")
    dma(55, SWS, "s101", "sc1")
    dma(55, SWS, "s101", "sc1", 1024)
    e("s_cmp_gt_u32 s58, 1")
    e("s_cbranch_scc1 L_w_owait")
    e(f"s_cmp_lg_u32 {sW}, 7")
    e("s_cbranch_scc1 L_w_owait")
    e("v_lshlrev_b32 v63, 2, v1")
    e(f"ds_write_b32 v63, v58 offset:{CKT}")
    split_weights()
    lab("L_w_owait")
    e("s_waitcnt vmcnt(0) lgkmcnt(0)")
    stamp(9)
    e("s_barrier")
    c("combine the 2x32 key splits for c tile w; check the rows against their checksums")
    for kk in range(2):
        rd128(60 + 4*kk, 54, WT + kk*64)
        tr(72 + 4*kk, 53, kk*8192)
        tr(74 + 4*kk, 53, kk*8192 + 1024)
    rd128(80, 50, 0)
    rd128(84, 50, 128)
    e(f"ds_read_b32 v69, v51 offset:{CKT}")
    e("s_waitcnt lgkmcnt(6)")
    mfma(88, 72, 60, None)
    e("s_waitcnt lgkmcnt(3)")
    mfma(88, 76, 64, 88)
    e("v_mov_b32 v68, s58")
    e("s_waitcnt lgkmcnt(1)")
    e("v_add3_u32 v80, v80, v81, v82")
    e("v_add3_u32 v84, v84, v85, v86")
    e("v_add3_u32 v80, v80, v83, v87")
    e("v_add_u32 v80, v80, v84")
    e("s_nop 1")
    e("v_add_u32_dpp v80, v80, v80 quad_perm:[1,0,3,2] row_mask:0xf bank_mask:0xf")
    e("v_cvt_pk_bf16_f32 v92, v88, v89")
    e("v_cvt_pk_bf16_f32 v93, v90, v91")
    e("v_add_u32_dpp v80, v80, v80 quad_perm:[2,3,0,1] row_mask:0xf bank_mask:0xf")
    e(f"s_mov_b64 exec, {sM2}")
    e(f"ds_write_b64 v45, v[92:93] offset:{QL}")
    e("s_mov_b64 exec, -1")
    e("v_add_u32_dpp v80, v80, v80 row_half_mirror row_mask:0xf bank_mask:0xf")
    e("s_waitcnt lgkmcnt(1)")
    e("v_cmp_ne_u32 vcc, v80, v69")
    e("s_and_b64 exec, exec, vcc")
    e("s_cbranch_execz L_w_onan")
    e(f"ds_max_u32 v7, v68 offset:{FLAGL}")
lab("L_w_onan")
e("s_mov_b64 exec, -1")
e("s_waitcnt lgkmcnt(0)")
e("s_barrier")
e(f"ds_read_b32 v68, v7 offset:{FLAGL}")
for s in range(4):
    rd128(72 + 4*s, 33, QL + s*64)
e(f"s_add_u32 s48, s62, {CPA}")
e(f"s_add_u32 s49, s62, {CPB}")
e("s_waitcnt lgkmcnt(3)")
mfma(88, 96, 72, None)
e("v_readfirstlane_b32 s45, v68")
for s in range(1, 4):
    e(f"s_waitcnt lgkmcnt({3 - s})")
    mfma(88, 96 + 4*s, 72 + 4*s, 88)
e("s_cmp_lg_u32 s45, s58")
e("s_cbranch_scc1 L_w_ook")
e(f"s_cmp_lt_u32 s58, {TMO >> 2}")
e("s_cbranch_scc1 L_w_oretry")
lab("L_w_ook")
e("s_nop 5")
pack_granule(92, 88)
e(f"s_mov_b64 exec, {sM2}")
if not P["x_noloc"]: e(f"buffer_store_dwordx4 v[92:95], v34, {SWS}, s48 offen")
e(f"buffer_store_dwordx4 v[92:95], v34, {SWS}, s49 offen sc1")
stamp(10)
if P["stamps"]: e("s_mov_b32 s86, s58")
lab("L_w_fin")
stamp(14)
dump_stamps()
e("s_endpgm")

lab("L_A")
c("================= attention CU: 16 heads x 128 keys =================")
if P["xmap"]:
    e(f"s_lshr_b32 s45, {sR}, 4")
    e(f"s_lshl1_add_u32 {sX}, {sX}, s45")
    e(f"s_or_b32 {sR}, {sR}, 16")
if P["a_pf"]:
    e("s_load_dwordx2 s[20:21], s[0:1], 24")
    e("s_lshl_b32 s18, 1, 22")
    e("s_lshl_b32 s19, 1, 17")
    srd(20, 4194304)
    e(f"s_and_b32 s45, {sR}, 15")
    e("s_lshl_b32 s45, s45, 18")
    e(f"s_lshl_b32 s46, {sX}, 10")
    e("s_add_u32 s45, s45, s46")
    e("v_and_b32 v4, 31, v0")
    e("v_lshlrev_b32 v4, 13, v4")
    e("v_bfe_u32 v5, v0, 5, 1")
    if P["a_pf"] == 1:
        e("v_lshl_add_u32 v4, v5, 9, v4")
        e("s_add_u32 s45, s45, 384")
    else:
        e("v_lshl_add_u32 v4, v5, 7, v4")
        e("s_add_u32 s45, s45, 256")
e("s_waitcnt lgkmcnt(0)")
if P["a_pf"]:
    e(f"s_cmp_gt_u32 {sW}, 1")
    e("s_cbranch_scc1 L_a_nopf")
    e(f"s_cmp_eq_u32 {sW}, 1")
    e("s_cbranch_scc1 L_a_pf1")
    e(f"buffer_load_dword v253, v4, {SA}, s45 offen")
    e("s_branch L_a_nopf")
    lab("L_a_pf1")
    e(f"buffer_load_dword v253, v4, {SB}, s45 offen")
    lab("L_a_nopf")
e("s_load_dwordx2 s[16:17], s[0:1], 8")
e("s_load_dwordx2 s[12:13], s[0:1], 88")
e("s_load_dwordx2 s[28:29], s[0:1], 40")
e("s_load_dwordx2 s[36:37], s[0:1], 64")
e("s_load_dwordx2 s[40:41], s[0:1], 72")
srd(16, 8388608); srd(12, WS_BYTES)
e("v_and_b32 v1, 63, v0")
e("v_mov_b32 v7, 0")
e("v_lshlrev_b32 v8, 4, v1")
e(f"s_sub_u32 s45, {sR}, 16")
e("s_and_b32 s57, s45, 1")
e("s_lshr_b32 s45, s45, 1")
e(f"s_lshl_b32 s58, {sX}, 3")
e("s_add_u32 s58, s58, s45")
e(f"s_lshl_b32 s45, {sW}, 1")
e("v_xor_b32 v10, s45, v1")
e("v_lshlrev_b32 v10, 4, v10")
e("s_xor_b32 s45, s45, 9")
e("v_xor_b32 v11, s45, v1")
e("v_lshlrev_b32 v11, 4, v11")
e("s_lshl_b32 s59, s58, 17")
e("s_lshl_b32 s61, s57, 20")
if P["o_swz"]: e(f"s_lshl_b32 s45, {sX}, 11")
else: e("s_lshl_b32 s45, s58, 8")
e("s_add_u32 s61, s61, s45")
e(f"s_add_u32 s61, s61, {OP}")
e("s_waitcnt lgkmcnt(0)")
stamp(1)
if P["x_s2"]: e("s_branch L_a_fin")
e(f"s_load_dword {sTAG}, s[12:13], 0")
e("v_and_b32 v238, 7, v1")
e("v_lshlrev_b32 v238, 7, v238")
e("s_lshl_b32 s62, s57, 13")
e(f"s_lshl_b32 s45, {sW}, 10")
e("s_add_u32 s62, s62, s45")
e(f"s_add_u32 s62, s62, {FLG}")
def a_loop():
    if P["a_delay"]: e(f"s_sleep {P['a_delay']}")
    c("quarters of the key block in arrival order: mine (HBM), the partner's, then the two the weight CUs help with")
    e("s_lshl_b32 s60, s57, 15")
    e(f"s_lshl_b32 s48, {sW}, 10")
    e("s_add_u32 s60, s60, s48")
    e("s_xor_b32 s46, s60, 0x8000")
    e("s_add_u32 s60, s60, s59")
    e("s_add_u32 s46, s46, s59")
    q = lambda who, hi: [(who, hi, k) for k in range(4)]
    if P["w_ckv_ord"] == 0: order = q("o", 0) + q("p", 0) + q("o", 1) + q("p", 1)
    elif P["w_ckv_ord"] == 2: order = q("o", 0) + q("o", 1) + q("p", 0) + q("p", 1)
    else: order = q("o", 0) + [x for pr in zip(q("o", 1), q("p", 0)) for x in pr] + q("p", 1)
    for i, (who, hi, k) in enumerate(order):
        if i == 12:
            e(f"buffer_load_dword v239, v238, {SWS}, s62 offen sc1")
        e(f"s_add_u32 m0, s48, {(2*hi + (who == 'p'))*32768 + k*8192}")
        e(f"s_add_u32 s45, {'s60' if who == 'o' else 's46'}, {hi*65536 + k*8192}")
        dma(10 + (k & 1), SA, "s45", "nt", shared=True)
        if P["a_win2"] < 63 and P["a_win2"] <= i < (15 if P["a_mid"] == 3 else 12):
            e(f"s_waitcnt vmcnt({P['a_win2']})")
def a_addr():
    c("addresses")
    e("v_lshrrev_b32 v4, 3, v2")
    e("v_and_b32 v5, 7, v2")
    e("v_lshlrev_b32 v12, 2, v4")
    e("v_xor_b32 v5, v5, v12")
    e("v_lshl_or_b32 v5, v5, 1, v4")
    e("v_xor_b32 v5, v5, v3")
    e("v_lshlrev_b32 v5, 4, v5")
    e("v_lshl_add_u32 v5, v2, 10, v5")
    e(f"s_lshl_b32 s45, {sW}, 14")
    e("v_add_u32 v12, s45, v5")
    e("v_xor_b32 v13, 0x40, v12")
    e("v_xor_b32 v14, 0x80, v12")
    e("v_xor_b32 v15, 0xc0, v12")
    e(f"v_add_u32 v20, {A_QL}, v5")
    e("v_xor_b32 v21, 0x40, v20")
    e("v_xor_b32 v22, 0x80, v20")
    e("v_xor_b32 v23, 0xc0, v20")
    e("v_lshrrev_b32 v4, 2, v2")
    e("v_lshl_add_u32 v4, v3, 2, v4")
    e("v_lshrrev_b32 v5, 3, v4")
    e("v_and_b32 v16, 7, v4")
    e("v_lshlrev_b32 v17, 2, v5")
    e("v_xor_b32 v16, v16, v17")
    e("v_lshl_or_b32 v16, v16, 1, v5")
    e("v_bfe_u32 v5, v2, 1, 1")
    e("v_xor_b32 v16, v16, v5")
    e(f"s_and_b32 s45, {sW}, 1")
    e("s_lshl_b32 s45, s45, 3")
    e("v_xor_b32 v16, s45, v16")
    e("v_lshlrev_b32 v16, 4, v16")
    e("v_and_b32 v5, 1, v2")
    e("v_lshl_add_u32 v16, v5, 3, v16")
    e("v_lshl_add_u32 v16, v4, 10, v16")
    e(f"s_lshr_b32 s45, {sW}, 1")
    e("s_lshl_b32 s45, s45, 8")
    e("v_add_u32 v16, s45, v16")
    e("v_xor_b32 v17, 0x20, v16")
    e("v_xor_b32 v18, 0x40, v16")
    e("v_xor_b32 v19, 0x60, v16")
    for tp in range(4):
        e(f"v_add_u32 v{24+tp}, 0x10000, v{16+tp}")
    c("Q write addresses: heads 2w, 2w+1")
    e(f"s_lshl_b32 s45, {sW}, 2")
    e("s_and_b32 s46, s45, 15")
    e(f"s_cmp_gt_u32 {sW}, 3")
    e("s_cselect_b32 s47, 9, 0")
    e("s_xor_b32 s46, s46, s47")
    e("v_xor_b32 v28, s46, v1")
    e("v_lshlrev_b32 v28, 4, v28")
    e(f"s_lshl_b32 s45, {sW}, 11")
    e(f"s_add_u32 s45, s45, {A_QL}")
    e("v_add_u32 v28, s45, v28")
    e("v_xor_b32 v29, 0x20, v28")
    e("v_lshlrev_b32 v30, 2, v2")
    e(f"v_add_u32 v30, {A_MX}, v30")
    e("v_mov_b32 v4, 0xff800000")
    e("ds_write_b32 v30, v4")
    e("v_lshlrev_b32 v242, 2, v1")
    e(f"v_add_u32 v242, {A_SM}, v242")
    e(f"s_lshl_b32 s45, {sW}, 8")
    e("v_add_u32 v254, s45, v242")
    e(f"s_lshr_b32 s45, {sW}, 1")
    e("s_lshl_b32 s45, s45, 10")
    e(f"s_and_b32 s46, {sW}, 1")
    e("s_lshl_b32 s46, s46, 3")
    e("s_add_u32 s45, s45, s46")
    e(f"s_add_u32 s45, s45, {A_PL}")
    e("v_add_u32 v31, s45, v8")
    e(f"v_add_u32 v236, {A_PL}, v8")
    c("O tile t, lane (n, g): 8 bytes at chunk 2t + (g>>1), half g&1 of the 128-B line of head n")
    e("v_lshrrev_b32 v246, 1, v3")
    e("v_and_b32 v4, 7, v2")
    e("v_xor_b32 v246, v246, v4")
    e("v_lshlrev_b32 v246, 4, v246")
    e("v_and_b32 v4, 1, v3")
    e("v_lshl_add_u32 v246, v4, 3, v246")
    e("v_lshl_add_u32 v246, v2, 7, v246")
    e(f"s_lshl_b32 s45, {sW}, 11")
    e(f"s_add_u32 s45, s45, {A_OT}")
    e("v_add_u32 v246, s45, v246")
    e("v_xor_b32 v247, 0x20, v246")
    e("v_xor_b32 v240, 0x40, v246")
    e("v_xor_b32 v241, 0x60, v246")
    e("v_lshrrev_b32 v4, 3, v1")
    e("v_and_b32 v5, 7, v1")
    e("v_xor_b32 v248, v4, v5")
    e("v_lshlrev_b32 v248, 4, v248")
    e("v_lshl_add_u32 v248, v4, 7, v248")
    e("v_add_u32 v248, s45, v248")
    e("v_lshlrev_b32 v237, 16, v4")
    e("v_lshl_add_u32 v237, v5, 4, v237")
    if P["o_swz"]:
        e(f"s_and_b32 s45, {sW}, 6")
        e("s_xor_b32 s45, s45, s58")
        e("s_and_b32 s45, s45, 7")
        e("v_xor_b32 v4, s45, v4")
        e("v_lshl_add_u32 v237, v4, 8, v237")
    e(f"s_lshl_b32 s45, {sW}, 8")
    e(f"s_add_u32 s45, s45, {A_CK}")
    e("v_lshl_add_u32 v249, v1, 2, s45")
    e("v_lshlrev_b32 v9, 9, v3")
    e("v_lshl_add_u32 v9, v2, 2, v9")
    e(f"v_add_u32 v9, {A_CK}, v9")
    e(f"s_lshr_b32 s45, {sW}, 1")
    e("s_lshl_b32 s45, s45, 14")
    e("s_add_u32 s61, s61, s45")
    e(f"s_and_b32 s45, {sW}, 1")
    e("s_lshl_b32 s45, s45, 7")
    e("s_add_u32 s61, s61, s45")
    e(f"s_lshr_b32 s45, {sX}, 2")
    e("s_lshl_b32 s63, s45, 15")
    e("s_lshl_b32 s45, s57, 14")
    e("s_add_u32 s63, s63, s45")
    e(f"s_lshl_b32 s45, {sW}, 11")
    e("s_add_u32 s63, s63, s45")
    e(f"s_add_u32 s63, s63, {QA}")
    e("s_lshl_b32 s96, s57, 6")
    e("s_add_u32 s96, s96, s58")
    e("s_lshl_b32 s96, s96, 10")
    e(f"s_add_u32 s96, s96, {ST}")
    e("s_mov_b32 s97, 0x3e0293ee")
    srd(8, 2048); srd(28, 4194304); srd(36, 1409024); srd(40, 2048)
    consts()
    c("output-projection role: column slice ms = (r-16)>>1, head pair hf = r&1")
    e(f"s_and_b32 s99, {sR}, 15")
    e("s_lshr_b32 s98, s99, 1")
    e("s_lshl_b32 s99, s98, 7")
    e("v_and_b32 v243, 7, v1")
    e("v_and_b32 v244, 1, v3")
    e("v_lshlrev_b32 v244, 1, v244")
    e("v_xor_b32 v243, v243, v244")
    e("v_lshlrev_b32 v243, 4, v243")
    e("v_lshrrev_b32 v244, 3, v1")
    e("v_lshl_add_u32 v243, v244, 10, v243")
    e("v_xor_b32 v244, 64, v243")
    e(f"s_and_b32 s45, {sW}, 1")
    e("s_lshl_b32 s45, s45, 6")
    e("v_xor_b32 v245, s45, v243")
    t0x("s100")
    e("s_lshl_b32 s100, s100, 4")
    e("s_mul_i32 s45, s57, 96")
    e("s_add_u32 s100, s100, s45")
    e(f"s_lshl_b32 s45, {sW}, 3")
    e("s_add_u32 s100, s100, s45")
    e("s_lshl_b32 s100, s100, 10")
    e("s_add_u32 s100, s100, s99")
    e(f"s_lshl_b32 s101, {sX}, 19")
    e("s_lshl_b32 s45, s57, 18")
    e("s_add_u32 s101, s101, s45")
    e(f"s_lshl_b32 s45, {sW}, 15")
    e("s_add_u32 s101, s101, s45")
    e("s_add_u32 s101, s101, s99")
    if P["w_pf"] == 2 and P["pf_n"] == 4 and not P["pf_split"] and not P["pf_late"]:
        c("waves 0-3 pull a contiguous 1/16 of this group's w_o rows into L2 once Q is in (waves 4-7: empty range)")
        e("v_lshlrev_b32 v255, 7, v1")
        e(f"s_and_b32 s46, {sR}, 15")
        e(f"s_lshl_b32 s47, {sX}, 19")
        e("s_lshl_b32 s45, s46, 15")
        e("s_add_u32 s47, s47, s45")
        e(f"s_lshl_b32 s45, {sW}, 13")
        e("s_add_u32 s47, s47, s45")
        e("s_mov_b32 s20, s28")
        e("s_mov_b32 s21, s29")
        e(f"s_cmp_lt_u32 {sW}, 4")
        e("s_cselect_b32 s22, s30, 0")
        e("s_mov_b32 s23, 0x00020000")
    elif P["w_pf"] in (2, 7, 8):
        c("waves 0-3 / 4-5 pull a contiguous 1/16 of this group's w_o / w2 rows into L2 once Q is in; waves 6-7 touch nothing")
        e("v_lshlrev_b32 v255, 7, v1")
        e(f"s_and_b32 s46, {sR}, 15")
        e(f"s_lshl_b32 s47, {sX}, 19")
        e("s_lshl_b32 s45, s46, 15")
        e("s_add_u32 s47, s47, s45")
        e(f"s_lshl_b32 s45, {sW}, 13")
        e("s_add_u32 s47, s47, s45")
        t0x("s48")
        e("s_lshl_b32 s48, s48, 14")
        e("s_mul_i32 s46, s46, 12288")
        e("s_add_u32 s48, s48, s46")
        e(f"s_and_b32 s45, {sW}, 1")
        e("s_mul_i32 s45, s45, 6144")
        e("s_add_u32 s48, s48, s45")
        e(f"s_cmp_lt_u32 {sW}, 4")
        e("s_cselect_b32 s47, s47, s48")
        e("s_cselect_b32 s20, s28, s36")
        e("s_cselect_b32 s21, s29, s37")
        e("s_cselect_b32 s22, s30, s38")
        e(f"s_cmp_lt_u32 {sW}, {(6, 4, 3, 2)[P['pf_split']]}")
        e("s_cselect_b32 s22, s22, 0")
        if P["pf_n"] < 6:
            e("s_mov_b32 s26, s22")
            e(f"s_cmp_lt_u32 {sW}, {P['pf_n']}")
            e("s_cselect_b32 s22, s22, 0")
            e("s_cselect_b32 s26, 0, s26")
            e("s_mov_b32 s24, s20")
            e("s_mov_b32 s25, s21")
            e("s_mov_b32 s27, 0x00020000")
        e("s_mov_b32 s23, 0x00020000")
def p3w():
    e(f"s_lshl_b32 s46, {sW}, 12")
    for i in range(4):
        e(f"s_add_u32 m0, s46, {A_WO + i*1024}")
        e(f"s_add_u32 s45, s101, {i*8192}")
        dma(243 + (i & 1), SD, "s45", "nt")
    e(f"s_lshl_b32 s46, {sW}, 10")
    e(f"s_add_u32 m0, s46, {A_W2}")
    e(f"s_cmp_gt_u32 {sW}, 3")
    dma(245, SF, "s100", "nt")
    e("s_cbranch_scc1 L_a_now2")
    e(f"s_add_u32 m0, s46, {A_W2 + 8192}")
    e("s_add_u32 s45, s100, 65536")
    dma(245, SF, "s45", "nt")
    lab("L_a_now2")
if P["a_nat"]:
    a_addr()
    if P["w_pf"] == 7: e(f"buffer_load_dword v253, v255, s[20:23], s47 offen")
    if P["a_nat"] == 1:
        c("the bulk stream starts once the lines the weight CUs wait for are in")
        e("s_waitcnt vmcnt(0)")
        e("s_barrier")
    if P["w_pf"] == 8: e(f"buffer_load_dword v253, v255, s[20:23], s47 offen")
    a_loop()
else:
    a_loop()
    a_addr()
def mk_trs(ts):
    trs = []
    for t in ts:
        for tp in range(4):
            base = 96 + (tp*4 + t)*4
            areg = (16 if t < 2 else 24) + tp
            trs.append((base, areg, (t & 1)*32768))
            trs.append((base + 2, areg, (t & 1)*32768 + 16384))
    return trs
def q_check(ok):
    e("v_max3_u32 v4, v224, v225, v226")
    e("v_max3_u32 v5, v227, v228, v229")
    e("v_max3_u32 v4, v4, v230, v231")
    e("v_max_u32 v4, v4, v5")
    e("v_cmp_eq_u32 vcc, -1, v4")
    e(f"s_cbranch_vccz {ok}")
def q_load():
    e(f"buffer_load_dwordx4 v[224:227], v8, {SWS}, s63 offen sc1")
    e(f"buffer_load_dwordx4 v[228:231], v8, {SWS}, s63 offen offset:1024 sc1")
def q_write():
    if P["x_dbg"]: e("s_memrealtime s[70:71]")
    stamp(3)
    e("ds_write_b128 v28, v[224:227]")
    e("ds_write_b128 v29, v[228:231] offset:1024")
def a_reads(cond, skip):
    e(f"s_cmp_{cond}_u32 {sW}, {2*P['a_mid'] - 1}")
    e(f"s_cbranch_scc1 {skip}")
    for s in range(16):
        rd128(32 + 4*s, 12 + (s & 3), (s >> 2)*256)
    lab(skip)
def q_first(name):
    e("s_cmp_lg_u64 s[48:49], 0")
    e(f"s_cbranch_scc1 {name}")
    if P["a_qk"] < 63: e(f"s_waitcnt vmcnt({P['a_qk']})")
    q_load()
    lab(name)
def flags_in():
    c("Q rows may be read only after their producers have marked them empty")
    e("s_waitcnt vmcnt(4)")
    e(f"v_cmp_ne_u32 vcc, {sTAG}, v239")
    e("s_mov_b64 s[48:49], vcc")
e("s_waitcnt lgkmcnt(0)")
e(f"s_add_u32 {sTAG}, {sTAG}, 1")
e(f"s_mov_b32 {sCNT}, 0")
if P["a_mid"] == 3:
    flags_in()
    if P["q_when"] == 0: q_first("L_a_q1")
else:
    e("s_waitcnt vmcnt(9)")
stamp(8)
e("s_barrier")
c("the first quarters are in: their fragments go to registers while the rest lands")
a_reads("gt", "L_a_ar1")
for t_ in mk_trs(range(P["a_mid"])): tr(*t_)
if P["a_mid"] == 2: flags_in()
if P["q_when"] == 1 or P["a_mid"] == 2: q_first("L_a_q1")
e("s_waitcnt vmcnt(2)")
e("s_cmp_eq_u64 s[48:49], 0")
e("s_cbranch_scc1 L_a_land")
e("s_waitcnt vmcnt(0)")
lab("L_a_land")
if P["x_dbg"]: e("s_memrealtime s[68:69]")
stamp(2)
if P["x_exit"]: e("s_branch L_a_fin")
e("s_barrier")
e("s_cmp_lg_u64 s[48:49], 0")
e("s_cbranch_scc1 L_a_slow0")
e("s_waitcnt vmcnt(0)")
q_check("L_a_fast")
q_load()
lab("L_a_slow0")
a_reads("le", "L_a_ar2")
e("s_cmp_eq_u64 s[48:49], 0")
e("s_cbranch_scc1 L_a_q")
lab("L_a_flg")
e(f"buffer_load_dword v239, v238, {SWS}, s62 offen sc1")
e(f"s_add_u32 {sCNT}, {sCNT}, 1")
e("s_waitcnt vmcnt(0)")
e(f"v_cmp_ne_u32 vcc, {sTAG}, v239")
e("s_cbranch_vccz L_a_qre")
e(f"s_cmp_lt_u32 {sCNT}, {TMO}")
e("s_cbranch_scc1 L_a_flg")
lab("L_a_qre")
if P["bo_q"]: e(f"s_sleep {P['bo_q']}")
q_load()
lab("L_a_q")
e("s_waitcnt vmcnt(0)")
q_check("L_a_qok")
e(f"s_add_u32 {sCNT}, {sCNT}, 1")
e(f"s_cmp_lt_u32 {sCNT}, {TMO}")
e("s_cbranch_scc1 L_a_qre")
lab("L_a_qok")
q_write()
e("s_waitcnt lgkmcnt(0)")
e("s_branch L_a_qk")
lab("L_a_fast")
q_write()
e(f"s_cmp_gt_u32 {sW}, {2*P['a_mid'] - 1}")
e("s_cbranch_scc1 L_a_ar3")
e("s_waitcnt lgkmcnt(0)")
e("s_branch L_a_qk")
lab("L_a_ar3")
for s in range(16):
    rd128(32 + 4*s, 12 + (s & 3), (s >> 2)*256)
e("s_waitcnt lgkmcnt(15)")
lab("L_a_qk")
e("s_barrier")
stamp(4)
c("scores for key tile w; the transposed fragments of the last quarter follow the Q fragments")
trs = mk_trs(range(P["a_mid"], 4))
for s in range(12):
    rd128(160 + 4*s, 20 + (s & 3), (s >> 2)*256)
if P["hint"]:
    e(f"s_cmp_lg_u32 {sW}, 1")
    e("s_cbranch_scc1 L_a_noh")
    e(f"v_mov_b32 v5, {sTAG}")
    e(f"s_sub_u32 s45, s96, {ST}")
    e("s_lshr_b32 s45, s45, 3")
    e(f"s_add_u32 s45, s45, {HINT}")
    e("s_mov_b64 exec, 1")
    e(f"buffer_store_dword v5, v7, {SWS}, s45 offen sc1")
    e("s_mov_b64 exec, -1")
    lab("L_a_noh")
elif P["w_pf"] == 2:
    e(f"buffer_load_dword v253, v255, s[20:23], s47 offen")
issued = 0
for s in range(16):
    if s == 3 and P["hint"] and P["w_pf"] == 2:
        e(f"buffer_load_dword v253, v255, s[20:23], s47 offen")
    e(f"s_waitcnt lgkmcnt({(11 if s < 4 else 15 - s) + issued})")
    mfma(232, 32 + 4*s, 160 + 4*s, None if s == 0 else 232)
    if s < 4:
        rd128(160 + 4*(s + 12), 20 + (s & 3), 3*256)
    if 3 <= s < 15:
        n = min((s + 1) - issued, len(trs))
        for _ in range(n): tr(*trs.pop(0))
        issued += n
e("s_nop 7")
e("v_max3_f32 v4, v232, v233, v234")
e("v_max_f32 v4, v4, v235")
e("ds_max_f32 v30, v4")
n = len(trs)
for t_ in trs: tr(*t_)
e(f"s_waitcnt lgkmcnt({n})")
e("s_barrier")
stamp(5)
e("ds_read_b32 v4, v30")
e("s_waitcnt lgkmcnt(0)")
lab("L_a_sm")
e("v_mul_f32 v4, s97, v4")
for k in range(4):
    e(f"v_fma_f32 v{232+k}, v{232+k}, s97, -v4")
for k in range(4):
    e(f"v_exp_f32 v{232+k}, v{232+k}")
e("s_nop 0")
e("v_cvt_pk_bf16_f32 v160, v232, v233")
e("v_cvt_pk_bf16_f32 v161, v234, v235")
e("v_add_f32 v232, v232, v233")
e("v_add_f32 v234, v234, v235")
e("ds_write_b64 v31, v[160:161]")
e("v_add_f32 v232, v232, v234")
e("ds_write_b32 v254, v232")
e("s_waitcnt lgkmcnt(0)")
e("s_barrier")
stamp(6)
for t in range(4):
    rd128(160 + 4*t, 236, t*1024)
c("P.V for c range w; a finished tile is packed and staged under the next tile's MFMAs")
OW = (246, 247, 240, 241)
def o_pack(tp):
    e(f"v_cvt_pk_bf16_f32 v{192+2*tp}, v{176+4*tp}, v{177+4*tp}")
    e(f"v_cvt_pk_bf16_f32 v{193+2*tp}, v{178+4*tp}, v{179+4*tp}")
    e(f"ds_write_b64 v{OW[tp]}, v[{192+2*tp}:{193+2*tp}]")
if P["pvt"]:
    for t in range(4):
        e(f"s_waitcnt lgkmcnt({3 - t})")
        for tp in (0, 1):
            mfma(176 + 4*tp, 96 + (tp*4 + t)*4, 160 + 4*t, None if t == 0 else 176 + 4*tp)
    k = 0
    for t in range(4):
        for tp in (2, 3):
            mfma(176 + 4*tp, 96 + (tp*4 + t)*4, 160 + 4*t, None if t == 0 else 176 + 4*tp)
            k += 1
            if k == 6:
                e("s_nop 0"); o_pack(0)
            if k == 7: o_pack(1)
    e("s_nop 3")
    o_pack(2)
    e("s_nop 0")
    o_pack(3)
else:
    for t in range(4):
        e(f"s_waitcnt lgkmcnt({3 - t})")
        for tp in range(4):
            mfma(176 + 4*tp, 96 + (tp*4 + t)*4, 160 + 4*t, None if t == 0 else 176 + 4*tp)
    e("s_nop 4")
    for tp in range(4): o_pack(tp)
OST = ("sc1", "sc0 sc1", "sc1 nt", "sc0 sc1 nt")[P["o_st"]]
if P["st_asym"]:
    c("row checksums: every lane adds up its 8 dwords, the statistics wave adds the 8 parts of a row")
    e("v_add3_u32 v216, v192, v193, v194")
    e("v_add3_u32 v217, v195, v196, v197")
    e("v_add3_u32 v216, v216, v198, v199")
    e("v_add_u32 v216, v216, v217")
    e("ds_write_b32 v249, v216")
    e("ds_read_b128 v[208:211], v248")
    e("ds_read_b128 v[212:215], v248 offset:1024")
    e("s_add_u32 s45, s61, 0x80000")
    e(f"s_cmp_lt_u32 {sW}, 4")
    e("s_cbranch_scc1 L_a_ost")
    c("waves 4-7 finish last: they release the statistics wave before their own stores")
    e("s_waitcnt lgkmcnt(2)")
    e("s_barrier")
    lab("L_a_ost")
    e("s_waitcnt lgkmcnt(1)")
    e(f"buffer_store_dwordx4 v[208:211], v237, {SWS}, s61 offen {OST}")
    e("s_waitcnt lgkmcnt(0)")
    e(f"buffer_store_dwordx4 v[212:215], v237, {SWS}, s45 offen {OST}")
    e("s_cbranch_scc0 L_a_nost")
    e(f"s_cmp_eq_u32 {sW}, 0")
    e("s_cbranch_scc1 L_a_stat")
    e("s_barrier")
    e("s_branch L_a_nost")
else:
    e("ds_read_b128 v[208:211], v248")
    e("ds_read_b128 v[212:215], v248 offset:1024")
    c("row checksums: every lane adds up its 8 dwords, the statistics wave adds the 8 parts of a row")
    e("v_add3_u32 v216, v192, v193, v194")
    e("v_add3_u32 v217, v195, v196, v197")
    e("v_add3_u32 v216, v216, v198, v199")
    e("v_add_u32 v216, v216, v217")
    e("ds_write_b32 v249, v216")
    e("s_add_u32 s45, s61, 0x80000")
    e("s_waitcnt lgkmcnt(2)")
    e(f"buffer_store_dwordx4 v[208:211], v237, {SWS}, s61 offen {OST}")
    e("s_waitcnt lgkmcnt(1)")
    e(f"buffer_store_dwordx4 v[212:215], v237, {SWS}, s45 offen {OST}")
    e(f"s_cmp_eq_u32 {sW}, 0")
    e("s_cbranch_scc1 L_a_stat")
    e("s_waitcnt lgkmcnt(0)")
    e("s_barrier")
    e("s_branch L_a_nost")
lab("L_a_stat")
for k in range(4):
    e(f"ds_read2st64_b32 v[{200+2*k}:{201+2*k}], v242 offset0:{2*k} offset1:{2*k+1}")
e(f"v_mov_b32 v7, {sTAG}")
e("s_waitcnt lgkmcnt(0)")
e("v_add_f32 v200, v200, v201")
e("v_add_f32 v202, v202, v203")
e("v_add_f32 v204, v204, v205")
e("v_add_f32 v206, v206, v207")
e("v_add_f32 v200, v200, v202")
e("v_add_f32 v204, v204, v206")
e("v_add_f32 v5, v200, v204")
swap_reduce("add", 5, 200, 16)
swap_reduce("add", 5, 200, 32)
if P["st_x"]:
    e("v_lshrrev_b32 v242, 2, v2")
    e("v_lshlrev_b32 v242, 8, v242")
    e("v_lshl_add_u32 v242, v3, 6, v242")
    e("v_and_b32 v200, 3, v2")
    e("v_lshl_add_u32 v242, v200, 4, v242")
e("s_barrier")
for k in range(4):
    e(f"ds_read2_b32 v[{216+2*k}:{217+2*k}], v9 offset0:{32*k} offset1:{32*k+16}")
if P["st_sleep"]: e(f"s_sleep {P['st_sleep']}")
e("s_waitcnt lgkmcnt(2)")
e("v_add3_u32 v6, v216, v217, v218")
e("s_waitcnt lgkmcnt(0)")
e("v_add3_u32 v220, v220, v221, v222")
e("v_add3_u32 v6, v6, v219, v223")
e("v_add_u32 v6, v6, v220")
e(f"buffer_store_dwordx4 v[4:7], v{242 if P['st_x'] else 8}, {SWS}, s96 offen sc1")
lab("L_a_nost")
stamp(7)
if P["x_dbg"]: e("s_memrealtime s[72:73]")
if P["pf_n"] < 6 and P["pf_late"]: e(f"buffer_load_dword v253, v255, s[24:27], s47 offen")
p3w()
c("addresses of the output projection")
e("v_lshrrev_b32 v4, 2, v2")
e("v_and_b32 v5, 3, v2")
e("v_lshl_add_u32 v31, v3, 3, v4")
e("v_lshrrev_b32 v50, 1, v4")
e("v_and_b32 v51, 1, v3")
e("v_lshl_or_b32 v50, v51, 1, v50")
e(f"s_and_b32 s45, {sW}, 3")
e("v_xor_b32 v50, s45, v50")
e("v_lshlrev_b32 v50, 5, v50")
e("v_lshl_add_u32 v50, v5, 3, v50")
e("v_lshl_add_u32 v50, v31, 7, v50")
e("v_and_b32 v32, 1, v2")
e("v_lshrrev_b32 v36, 1, v2")
e("v_lshlrev_b32 v36, 3, v36")
e("v_lshl_add_u32 v36, v3, 1, v36")
e(f"s_lshl_b32 s45, {sW}, 6")
e("v_add_u32 v36, s45, v36")
e(f"v_mul_u32_u24 v38, {KBS}, v32")
e("v_add_u32 v36, v36, v38")
e("v_lshrrev_b32 v35, 1, v1")
e("v_lshl_add_u32 v35, v35, 3, v38")
e(f"s_and_b32 s45, {sW}, 1")
e("s_lshl_b32 s45, s45, 8")
e("v_add_u32 v35, s45, v35")
e("v_lshl_add_u32 v38, v3, 4, v38")
e("v_lshlrev_b32 v49, 3, v2")
e("v_lshl_add_u32 v49, v3, 1, v49")
e("s_lshl_b32 s100, s57, 10")
e("s_add_u32 s100, s100, s99")
e(f"buffer_load_ushort v180, v49, {SX}, s100 offen")
e("v_lshlrev_b32 v92, 12, v3")
e("v_lshl_add_u32 v92, v2, 4, v92")
e("v_lshlrev_b32 v93, 8, v2")
e("v_lshl_add_u32 v93, v3, 4, v93")
e(f"s_lshl_b32 s46, {sW}, 6")
e("v_add_u32 v93, s46, v93")
e("s_lshl_b32 s59, s98, 13")
e(f"s_lshl_b32 s46, {sX}, 9")
e("s_add_u32 s59, s59, s46")
e("s_lshl_b32 s46, s57, 8")
e("s_add_u32 s59, s59, s46")
e(f"s_add_u32 s59, s59, {OUTP}")
e(f"s_lshl_b32 s60, {sX}, 14")
e("s_lshl_b32 s47, s57, 13")
e("s_add_u32 s60, s60, s47")
if P["inl"]:
    e(f"s_and_b32 s47, {sW}, 1")
    e("s_lshl_b32 s47, s47, 12")
    e("s_add_u32 s60, s60, s47")
else:
    e("v_lshlrev_b32 v34, 10, v3")
    e("v_lshl_add_u32 v34, v2, 4, v34")
    e(f"s_lshr_b32 s47, {sW}, 2")
    e("s_lshl_b32 s47, s47, 12")
    e("s_add_u32 s60, s60, s47")
    e(f"s_and_b32 s47, {sW}, 3")
    e("s_lshl_b32 s47, s47, 8")
    e("s_add_u32 s60, s60, s47")
e(f"s_add_u32 s61, s60, {CPB}")
e(f"s_add_u32 s60, s60, {CPA}")
if P["stamps"] == 3:
    e("s_waitcnt vmcnt(7)")
    stamp(8)
    e("s_waitcnt vmcnt(0)")
    stamp(15)
e(f"s_cmp_lt_u32 {sW}, 4")
e("s_cbranch_scc1 L_a_nohg")
e(f"s_cmp_eq_u32 {sW}, 7")
e("s_cbranch_scc1 L_a_nohg")
c("waves 4-6: sum the 16 partials of 16 granules of h, SiLU")
e(f"s_cmp_ge_u32 {sX}, 6")
e("s_cselect_b32 s45, 10, 11")
e("s_lshl_b32 s45, s45, 3")
e("s_mul_i32 s46, s57, 48")
e("s_sub_u32 s45, s45, s46")
e(f"s_lshl_b32 s46, {sW}, 4")
e("s_sub_u32 s46, s46, 64")
e("v_add_u32 v60, s46, v2")
e("v_cmp_gt_u32 s[46:47], s45, v60")
e(f"s_lshl_b32 s48, {sX}, 15")
e("s_mul_i32 s49, s57, 768")
e("s_add_u32 s48, s48, s49")
e(f"s_lshl_b32 s49, {sW}, 8")
e("s_add_u32 s48, s48, s49")
e(f"s_add_u32 s48, s48, {HPA - 1024}")
e(f"s_add_u32 s49, s48, {HPB-HPA}")
e("v_lshlrev_b32 v60, 11, v3")
e("v_lshl_add_u32 v60, v2, 4, v60")
e("v_add_u32 v61, 0x2000, v60")
e("v_add_u32 v62, 0x4000, v60")
e("v_add_u32 v63, 0x6000, v60")
dual_poll4("hh", 64, [60, 61, 62, 63], "s48", "s49", "s[46:47]", lr=P["lr2"])
sum4_reduce(64)
round_bf16(64)
e("v_mul_f32 v65, 0xbfb8aa3b, v64")
e("v_exp_f32 v65, v65")
e("s_nop 0")
e("v_add_f32 v65, 1.0, v65")
e("v_rcp_f32 v65, v65")
e("s_nop 0")
e("v_mul_f32 v64, v64, v65")
e("v_cndmask_b32 v64, 0, v64, s[46:47]")
e("v_cvt_pk_bf16_f32 v64, v64, v64")
e(f"ds_write_b16 v36, v64 offset:{KB + 256}")
lab("L_a_nohg")
e("s_waitcnt vmcnt(0) lgkmcnt(0)")
stamp(9)
e("s_barrier")
e(f"s_cmp_gt_u32 {sW}, 3")
e("s_cbranch_scc1 L_a_nofrag")
for s in range(3):
    rd128(60 + 4*s, 38, KB + 512 + s*64)
    tr(144 + 4*s, 50, A_W2 + s*4096)
    tr(146 + 4*s, 50, A_W2 + s*4096 + 512)
for s in range(8):
    tr(112 + 4*s, 50, A_WO + s*4096)
    tr(114 + 4*s, 50, A_WO + s*4096 + 512)
e("s_waitcnt lgkmcnt(0)")
for s in range(3):
    mfma(176, 144 + 4*s, 60 + 4*s, None if s == 0 else 176)
if P["inl"]:
    e("s_branch L_a_noh25")
    lab("L_a_nofrag")
    e(f"s_cmp_gt_u32 {sW}, 5")
    e("s_cbranch_scc1 L_a_noh25")
    stamp(10)
    dual_poll4("h25", 64, [8, 8, 8, 8], "s60", "s61", lr=P["lr2"], offs=(0, 1024, 2048, 3072))
    stamp(11)
    if P["x_dbg"]: e("s_memrealtime s[74:75]")
    sum4(64)
    e("v_cvt_pk_bf16_f32 v64, v64, v65")
    e("v_cvt_pk_bf16_f32 v65, v66, v67")
    e(f"ds_write_b64 v35, v[64:65] offset:{KB}")
    e("s_waitcnt lgkmcnt(0)")
else:
    lab("L_a_nofrag")
    stamp(10)
    dual_poll("h25", 72, 34, "s60", "s61", lr=P["lr2"], bo=P["bo_h25"])
    stamp(11)
    unpack_granule(72)
    halving_reduce(72)
    e("v_cvt_pk_bf16_f32 v72, v72, v72")
    e(f"ds_write_b16 v36, v72 offset:{KB}")
    e("s_waitcnt lgkmcnt(0)")
lab("L_a_noh25")
e("s_barrier")
e(f"s_cmp_gt_u32 {sW}, 3")
e("s_cbranch_scc1 L_a_nop3b")
c("P3b: 64 output columns over two heads (the FFN part is already in the accumulator)")
for s in range(8):
    rd128(56 + 4*s, 38, KB + s*64)
for s in range(8):
    e(f"s_waitcnt lgkmcnt({7 - s})")
    mfma(176, 112 + 4*s, 56 + 4*s, 176)
e("s_nop 7")
pack_granule(88, 176)
e(f"s_mov_b64 exec, {sM2}")
e(f"ds_write_b128 v93, v[88:91] offset:{KB + 2048}")
e("s_mov_b64 exec, -1")
e("s_waitcnt lgkmcnt(0)")
lab("L_a_nop3b")
e("s_barrier")
e(f"s_cmp_lg_u32 {sW}, 4")
e("s_cbranch_scc1 L_a_fin")
e("s_mov_b32 exec_hi, 0")
rd128(88, 8, KB + 2048)
e(f"s_and_b32 s48, {sR}, 15")
e("s_lshl_b32 s48, s48, 12")
e(f"s_add_u32 s48, s48, {OUTP}")
e("s_waitcnt lgkmcnt(0)")
e(f"buffer_store_dwordx4 v[88:91], v92, {SWS}, s59 offen sc1")
e("s_mov_b64 exec, -1")
stamp(12)
e(f"s_cmp_lg_u32 {sX}, s98")
e("s_cbranch_scc1 L_a_fin")
c("reducer for (column slice ms, batch r&1): 16 partials")
if P["red_sleep"] == 99: e("s_waitcnt vmcnt(0)")
elif P["red_sleep"]:
    c("back off before the first poll: reading a line while it is being written slows the write down")
    e(f"s_sleep {P['red_sleep']}")
dual_poll4("red", 64, [8, 8, 8, 8], "s48", "s48", offs=(0, 1024, 2048, 3072))
stamp(13)
sum4_reduce(64)
e("v_lshlrev_b32 v180, 16, v180")
e("v_add_f32 v64, v64, v180")
e("v_cvt_pk_bf16_f32 v64, v64, v64")
e(f"buffer_store_short v64, v49, {SO}, s100 offen {'sc1' if P['out_sc1'] == 1 else 'sc0 sc1' if P['out_sc1'] == 2 else 'nt' if P['out_sc1'] == 3 else ''}")
e(f"s_cmpk_lg_u32 s2, {4 if P['xmap'] else 0x80}")
e("s_cbranch_scc1 L_a_fin")
e(f"v_mov_b32 v57, {sTAG}")
e("v_mov_b32 v58, 0")
e("s_mov_b64 exec, 1")
e(f"buffer_store_dword v57, v58, {SWS}, 0 offen sc1")
if P["x_amp"]:
    e("s_memrealtime s[66:67]")
    e("s_waitcnt lgkmcnt(0)")
    e(f"s_sub_u32 s45, s{P['x_amp']}, s64")
    e("s_lshl_b32 s45, s45, 2")
    e("s_add_u32 s45, s45, s66")
    lab("L_amp")
    e("s_memrealtime s[46:47]")
    e("s_waitcnt lgkmcnt(0)")
    e("s_sub_u32 s46, s46, s45")
    e("s_cmp_lt_i32 s46, 0")
    e("s_cbranch_scc1 L_amp")
elif P["x_dbg"]:
    e("s_load_dwordx2 s[20:21], s[0:1], 80")
    e("s_memrealtime s[66:67]")
    srd(20, 256)
    e("s_waitcnt lgkmcnt(0)")
    for k, r_ in enumerate((66, 68, 70, 72, 74)):
        e(f"s_sub_u32 s45, s{r_}, s64")
        e("v_mov_b32 v57, s45")
        e(f"buffer_store_dword v57, v58, s[20:23], 0 offen offset:{4*k}")
for _ in range(P["x_endsleep"]): e("s_sleep 127")
lab("L_a_fin")
stamp(14)
dump_stamps()
lab("L_end")
e("s_endpgm")
lab("L_codeend")
out.append('.section .rodata,"a"')
out.append(".p2align 6")
out.append(f".amdhsa_kernel {KN}")
out.append("""  .amdhsa_next_free_vgpr 256
  .amdhsa_next_free_sgpr 102
  .amdhsa_accum_offset 256
  .amdhsa_group_segment_fixed_size 0
  .amdhsa_kernarg_size 96
  .amdhsa_user_sgpr_count 2
  .amdhsa_user_sgpr_kernarg_segment_ptr 1
  .amdhsa_system_sgpr_workgroup_id_x 1
.end_amdhsa_kernel""")
open(sys.argv[1], "w").write("\n".join(out) + "\n")
```

```python
import sys
NAME = "parallel_sum__compressed_kv_cla__dense_activation_silu__decode"
KN = NAME + "_kernel"

P = dict(
    stamps=0,
    a_delay=0,
    a_win=63,
    a_nwin=0,
    red_sleep=12,
    localrounds=16,
    x_exit=0, x_s2=0, x_wc=0, x_half=0,
    a_fpos=12,
    a_win2=3,
    w_win=63,
    p3w_early=0,
    w_pf=2,
    h0_k=0,
    s2_gate=0,
    h0_sleep=0,
    a_lag=4,
    nt=0,
    nt_ckv=0,
    x_dbg=0, x_amp=0, x_endsleep=0, x_startsleep=0,
    st_sleep=0,
    pf_nt=0,
    xmap=0,
    lr2=32,
    out_lds=1,
    a_qk=1,
    w_ckv=5,
    w_ckv_ord=0,
    a_pf=2,
    qk_stag=0,
    smask=0xffff,
    tr_pre=8,
    out_sc1=0, x_noloc=0,
    w_slow=0,
    inl=0, pvt=1,
    a_nat=1, w_nat=1,
    h2w=1,
    a_mid=2,
    q_when=0,
    o_st=0, o_pre=0, st_x=1, hint=0, hint_d=30, hint_spec=1,
    ffn_early=1, bo_st=0, bo_q=0, bo_h25=0,
    o_swz=0,
    pf_split=0,
    st_asym=0, pf_n=4, pf_late=0,
    uk_late=0,
    uk_sleep=0, h0_new=1,
    h0_b=0,
    w2_delay=0,
)
for a in sys.argv[2:]:
    k, v = a.split("=")
    assert k in P, k
    P[k] = int(v, 0)

EPOCH = 0x0
FLG = 0x4000
CKF = 0x2000
QPA, QPB = 0x10000, 0x30000
QA = 0x50000
ST = 0x340000
HINT = 0x8000
HPA, HPB = 0xC0000, 0x300000
CPA, CPB = 0x70000, 0x90000
OUTP = 0xB0000
OP = 0x100000
TS = 0x400000
WS_BYTES = 0x10000000
R0 = 0
XN = 32768; XNS = 1088
QL = XN + 2304; QLS = 320
QST = XN + 2944
WT = XN + 5248; WTS = 192
FLAGL = XN + 5632
CKT = XN + 5760
R1, W1L, OIN = 38912, 83968, 100352
A_QL, A_PL, A_MX, A_SM = 131072, 147456, 151552, 152064
A_CK = 81920
A_OT = 65536
A_WO, A_W2, KB = 0, 32768, 45056
KBS = 832
LDS_BYTES = 154880
TMO = 1 << 18

out = []
def e(s): out.append("  " + s)
def lab(s): out.append(s + ":")
def c(s): out.append("  ; " + s)

sX, sR, sW, sH, sJ = "s3", "s4", "s5", "s6", "s7"
SX, SWS, SA, SB, SC, SD, SE, SF, SO = (f"s[{i}:{i+3}]" for i in (8, 12, 16, 20, 24, 28, 32, 36, 40))
sTAG = "s44"
sPK0, sPK1, sPK2, sUP = "s50", "s51", "s52", "s53"
sM2 = "s[54:55]"
sCNT = "s56"
def stamp(k):
    if P["stamps"] and (P["smask"] >> k) & 1:
        e(f"s_{'memtime' if P['stamps'] == 4 else 'memrealtime'} s[{64+2*k}:{65+2*k}]")
def dump_stamps():
    if not P["stamps"]: return
    e("s_mov_b64 exec, -1")
    e("s_waitcnt lgkmcnt(0)")
    if P["stamps"] == 2:
        e("s_getreg_b32 s94, hwreg(HW_REG_HW_ID)")
    for k in range(16):
        e(f"v_writelane_b32 v250, s{64+2*k}, {k}")
    e("s_lshl_b32 s45, s2, 9")
    e(f"s_lshl_b32 s46, {sW}, 6")
    e("s_add_u32 s45, s45, s46")
    e(f"s_add_u32 s45, s45, {TS}")
    e("v_lshlrev_b32 v251, 2, v1")
    e("s_mov_b64 exec, 0xffff")
    e(f"buffer_store_dword v250, v251, {SWS}, s45 offen")

def srd(idx, nbytes):
    e(f"s_mov_b32 s{idx+2}, {nbytes}")
    e(f"s_mov_b32 s{idx+3}, 0x00020000")
def pack_granule(g, a):
    e(f"v_perm_b32 v{g}, v{a}, v{a+3}, {sPK0}")
    e(f"v_perm_b32 v{g+1}, v{a+1}, v{a+3}, {sPK1}")
    e(f"v_perm_b32 v{g+2}, v{a+2}, v{a+3}, {sPK2}")
    e(f"v_mov_b32 v{g+3}, {sTAG}")
def unpack_granule(g):
    e(f"v_perm_b32 v{g+3}, v{g+1}, v{g}, {sUP}")
    e(f"v_lshl_or_b32 v{g+3}, v{g+2}, 24, v{g+3}")
def halving_reduce(g):
    e("s_nop 1")
    e(f"v_permlane32_swap_b32 v{g}, v{g+2}")
    e(f"v_permlane32_swap_b32 v{g+1}, v{g+3}")
    e("s_nop 0")
    e(f"v_add_f32 v{g}, v{g}, v{g+2}")
    e(f"v_add_f32 v{g+1}, v{g+1}, v{g+3}")
    e("s_nop 1")
    e(f"v_permlane16_swap_b32 v{g}, v{g+1}")
    e("s_nop 0")
    e(f"v_add_f32 v{g}, v{g}, v{g+1}")
def dual_poll(name, dst, voff, sA, sB, first_extra=None, after_first="vmcnt(0)", lr=None, bo=0):
    lr = P["localrounds"] if lr is None else lr
    if lr == 0: sA = sB
    e(f"s_mov_b32 {sCNT}, 0")
    e(f"buffer_load_dwordx4 v[{dst}:{dst+3}], v{voff}, {SWS}, {sA} offen sc1")
    if first_extra: first_extra()
    e(f"s_waitcnt {after_first}")
    lab(f"L_{name}_chk")
    e(f"v_cmp_ne_u32 vcc, {sTAG}, v{dst+3}")
    e(f"s_cbranch_vccz L_{name}_ok")
    e(f"s_add_u32 {sCNT}, {sCNT}, 1")
    e(f"s_cmp_gt_u32 {sCNT}, {TMO}")
    e(f"s_cbranch_scc1 L_{name}_ok")
    if sA != sB:
        e(f"s_cmp_gt_u32 {sCNT}, {lr}")
        e(f"s_cselect_b32 s45, {sCNT}, 0")
        e("s_and_b32 s45, s45, 3")
        e("s_cmp_eq_u32 s45, 3")
        e(f"s_cselect_b32 s45, {sB}, {sA}")
    else:
        e(f"s_mov_b32 s45, {sA}")
    if bo: e(f"s_sleep {bo}")
    e(f"buffer_load_dwordx4 v[{dst}:{dst+3}], v{voff}, {SWS}, s45 offen sc1")
    e("s_waitcnt vmcnt(0)")
    e(f"s_branch L_{name}_chk")
    lab(f"L_{name}_ok")
def dual_poll4(name, dst, voffs, sA, sB, valid=None, lr=None, offs=(0, 0, 0, 0), first=None):
    lr = P["localrounds"] if lr is None else lr
    if lr == 0: sA = sB
    e(f"s_mov_b32 {sCNT}, 0")
    e(f"s_mov_b32 s45, {sA}")
    if first:
        for i in range(4):
            e(f"buffer_load_dwordx4 v[{dst+4*i}:{dst+4*i+3}], v{voffs[i]}, {SWS}, s45 offen offset:{offs[i]} sc1")
        n = first()
        e(f"s_waitcnt vmcnt({n})")
        e(f"s_branch L_{name}_chk")
    lab(f"L_{name}_ld")
    for i in range(4):
        e(f"buffer_load_dwordx4 v[{dst+4*i}:{dst+4*i+3}], v{voffs[i]}, {SWS}, s45 offen offset:{offs[i]} sc1")
    e(f"s_add_u32 {sCNT}, {sCNT}, 1")
    if sA != sB:
        e(f"s_cmp_gt_u32 {sCNT}, {lr}")
        e(f"s_cselect_b32 s45, {sCNT}, 0")
        e("s_and_b32 s45, s45, 3")
        e("s_cmp_eq_u32 s45, 3")
        e(f"s_cselect_b32 s45, {sB}, {sA}")
    else:
        e(f"s_mov_b32 s45, {sA}")
    e("s_waitcnt vmcnt(0)")
    lab(f"L_{name}_chk")
    t = dst + 16
    for i in range(4):
        e(f"v_xor_b32 v{t+i}, {sTAG}, v{dst+4*i+3}")
    e(f"v_or3_b32 v{t}, v{t}, v{t+1}, v{t+2}")
    e(f"v_or_b32 v{t}, v{t}, v{t+3}")
    e(f"v_cmp_ne_u32 vcc, 0, v{t}")
    if valid:
        e(f"s_and_b64 vcc, vcc, {valid}")
        e(f"s_cbranch_scc0 L_{name}_ok")
    else:
        e(f"s_cbranch_vccz L_{name}_ok")
    e(f"s_cmp_lt_u32 {sCNT}, {TMO}")
    e(f"s_cbranch_scc1 L_{name}_ld")
    lab(f"L_{name}_ok")
def sum4(dst):
    for i in range(4):
        unpack_granule(dst + 4*i)
    for k in range(4):
        e(f"v_add_f32 v{dst+k}, v{dst+k}, v{dst+4+k}")
        e(f"v_add_f32 v{dst+8+k}, v{dst+8+k}, v{dst+12+k}")
    for k in range(4):
        e(f"v_add_f32 v{dst+k}, v{dst+k}, v{dst+8+k}")
def sum4_reduce(dst):
    sum4(dst)
    halving_reduce(dst)
def mfma(d, a, b, cc):
    cs = "0" if cc is None else f"v[{cc}:{cc+3}]"
    e(f"v_mfma_f32_16x16x32_bf16 v[{d}:{d+3}], v[{a}:{a+3}], v[{b}:{b+3}], {cs}")
def dma(voff, srd_, soff, flags, off=0, shared=False):
    if flags == "nt" and not P["nt_ckv" if srd_ in (SD, SF) or shared else "nt"]: flags = ""
    o = f" offset:{off}" if off else ""
    e(f"buffer_load_dwordx4 v{voff}, {srd_}, {soff} offen{o} {flags} lds")
def row_allreduce16(op, v):
    for ctl in ("quad_perm:[1,0,3,2]", "quad_perm:[2,3,0,1]", "row_half_mirror", "row_mirror"):
        e("s_nop 1")
        e(f"v_{op}_f32_dpp v{v}, v{v}, v{v} {ctl} row_mask:0xf bank_mask:0xf")
def oct_reduce_u32(vs):
    for ctl in ("quad_perm:[1,0,3,2]", "quad_perm:[2,3,0,1]", "row_half_mirror"):
        e("s_nop 1" if len(vs) == 1 else "s_nop 0")
        for v in vs:
            e(f"v_add_u32_dpp v{v}, v{v}, v{v} {ctl} row_mask:0xf bank_mask:0xf")
def swap_reduce(op, v, t, which):
    e(f"v_mov_b32 v{t}, v{v}")
    e("s_nop 1")
    e(f"v_permlane{which}_swap_b32 v{v}, v{t}")
    e("s_nop 0")
    e(f"v_{op}_f32 v{v}, v{v}, v{t}")
def round_bf16(v):
    e(f"v_cvt_pk_bf16_f32 v{v}, v{v}, v{v}")
    e(f"v_lshlrev_b32 v{v}, 16, v{v}")
def tr(dst, addr, off):
    e(f"ds_read_b64_tr_b16 v[{dst}:{dst+1}], v{addr} offset:{off}")
def rd128(dst, addr, off):
    e(f"ds_read_b128 v[{dst}:{dst+3}], v{addr} offset:{off}")

hdr = open("cdna_kernels/" + NAME + ".s.ref").read().split("; Override launch")[0]
out.append(hdr.rstrip())
out.append(f"; @launch grid=(256,1,1) block=(512,1,1) lds={LDS_BYTES}")
out.append('.amdgcn_target "amdgcn-amd-amdhsa--gfx950"')
out.append(".text")
out.append("""; ------------------------------------------------------------------------------------------------
; One persistent launch, one workgroup per CU (x = id & 7, r = id >> 3).  Absorbed form of the attention:
; r >= 16 "attention CU" (16 heads x 128 keys): scores, softmax, P.V, then 64 output columns over a head pair
; the tag back.  Small vectors travel as 16-byte granules {3 x 24-bit-rounded floats carrying a 4th, tag}; Qa rows are
; marked empty first (flag) and recognised by content; O rows are checked against a checksum in their statistics
; write-through copy that the reader falls back to, so no placement is assumed.  Every wait is bounded.
; ------------------------------------------------------------------------------------------------""")
out.append(f".globl {KN}")
out.append(".p2align 8")
out.append(f".type {KN},@function")
lab(KN)
c("the first 256 bytes hold everything waves 0-3 of a weight CU need to start the w_q stream")
stamp(0)
if P["x_dbg"]: e("s_memrealtime s[64:65]")
for _ in range(P["x_startsleep"]): e("s_sleep 127")
e("s_load_dwordx2 s[16:17], s[0:1], 16")
e("s_load_dwordx2 s[8:9], s[0:1], 0")
e("s_getpc_b64 s[46:47]")
lab("L_pc")
e("v_lshlrev_b32 v5, 7, v0")
e("s_cmpk_ge_u32 s2, 0x100")
e("s_cbranch_scc1 L_end")
e("v_min_u32 v5, L_codeend-L_pc-4, v5")
e("v_lshrrev_b32 v4, 6, v0")
e("global_load_dword v252, v5, s[46:47]")
e(f"v_readfirstlane_b32 {sW}, v4")
e(f"s_lshr_b32 {sR}, s2, 3")
e(f"s_and_b32 {sX}, s2, {3 if P['xmap'] else 7}")
e("v_and_b32 v2, 15, v0")
e("v_bfe_u32 v3, v0, 4, 2")
if P["xmap"]: e("s_bitcmp1_b32 s2, 2")
else: e(f"s_cmp_ge_u32 {sR}, 16")
e("s_cbranch_scc1 L_A")
e(f"s_lshr_b32 s45, {sR}, 2")
e(f"s_lshl{3 if P['xmap'] else 2}_add_u32 {sH}, {sX}, s45")
e(f"s_and_b32 {sJ}, {sR}, 3")
e(f"s_and_b32 s58, {sW}, 3")
e(f"s_lshl2_add_u32 s45, {sJ}, s58")
e("s_lshl_b32 s45, s45, 18")
e(f"s_lshl_b32 s57, {sH}, 8")
e("s_add_u32 s57, s57, s45")
e("s_lshl_b32 s58, s58, 13")
e("v_lshlrev_b32 v4, 1, v3")
e("v_xor_b32 v4, v2, v4")
e("v_lshlrev_b32 v4, 4, v4")
e("v_lshl_add_u32 v10, v3, 13, v4")
if P["x_wc"]:
    e("v_and_b32 v10, 63, v0")
    e("v_lshlrev_b32 v10, 4, v10")
    e(f"s_lshl_b32 s57, {sH}, 2")
    e(f"s_add_u32 s57, s57, {sJ}")
    e("s_lshl_b32 s57, s57, 15")
    e("s_add_u32 s57, s57, s58")
e("v_lshlrev_b32 v5, 25, v0")
e("v_lshrrev_b32 v5, 21, v5")
e("s_lshl_b32 s18, 1, 22")
e("s_lshl_b32 s19, 1, 17")
e("s_mov_b32 m0, s58")
e("s_movk_i32 s48, 0x80")
e(f"s_lshl_b32 s49, 1, {10 if P['x_wc'] else 15}")
e("s_mov_b32 s47, 3")
e(f"s_cmp_gt_u32 {sW}, 3")
e("s_waitcnt lgkmcnt(0)")
e("global_load_dwordx4 v[20:23], v5, s[8:9]")
e("s_cbranch_scc1 L_w_hi")
if P["x_s2"]: e("s_branch L_w_hi")
lab("L_wq")
dma(10, SA, "s57", "nt")
e("s_addk_i32 m0, 0x400")
e("s_add_u32 s57, s57, s49")
dma(10, SA, "s57", "nt")
e("s_addk_i32 m0, 0x400")
e("s_add_u32 s57, s57, s49")
e("v_xor_b32 v10, s48, v10")
e("s_sub_u32 s47, s47, 1")
e("s_cbranch_scc0 L_wq")
e(f"s_sub_u32 s57, s57, {0x2000 if P['x_wc'] else 0x40000}")
lab("L_w_hi")
stamp(1)
c("================= weight CU: head h = 4x + (r>>2), quarter j = r&3 =================")
if P["xmap"]:
    e(f"s_lshr_b32 {sX}, {sH}, 2")
    e(f"s_and_b32 {sR}, {sR}, 15")
e("s_load_dwordx2 s[12:13], s[0:1], 88")
e("s_load_dwordx2 s[20:21], s[0:1], 24")
e("s_load_dwordx2 s[24:25], s[0:1], 32")
e("s_load_dwordx2 s[32:33], s[0:1], 56")
WPF = P["w_pf"] in (1, 3) or P["pf_split"]
if WPF:
    e("s_load_dwordx2 s[28:29], s[0:1], 40")
    e("s_load_dwordx2 s[36:37], s[0:1], 64")
if P["w_ckv"]: e("s_load_dwordx2 s[40:41], s[0:1], 8")
srd(12, WS_BYTES); srd(20, 4194304)
e("v_and_b32 v1, 63, v0")
e("v_mov_b32 v7, 0")
e("v_lshlrev_b32 v8, 4, v1")
e("v_xor_b32 v4, v2, v3")
e("v_lshlrev_b32 v4, 4, v4")
e("v_lshl_add_u32 v12, v3, 13, v4")
e("v_xor_b32 v13, 0x40, v12")
e("v_xor_b32 v14, 0x80, v12")
e("v_xor_b32 v15, 0xc0, v12")
e(f"s_lshl_b32 s59, {sX}, 4")
e(f"s_add_u32 s59, s59, {sR}")
e("v_lshlrev_b32 v9, 15, v3")
e("v_lshl_add_u32 v9, v2, 4, v9")
e("s_lshl_b32 s60, s59, 8")
e(f"s_add_u32 s60, s60, {QA}")
e("s_lshl_b32 s62, s59, 10")
e(f"s_add_u32 s45, s62, {QPA}")
e("v_lshlrev_b32 v28, 7, v1")
e("v_mov_b32 v24, -1")
e("v_mov_b32 v25, -1")
e("v_mov_b32 v26, -1")
e("v_mov_b32 v27, -1")
e("s_waitcnt lgkmcnt(0)")
e(f"s_load_dword {sTAG}, s[12:13], 0")
e(f"s_cmp_lg_u32 {sW}, 0")
e("s_cbranch_scc1 L_w_norst")
e("s_mov_b64 exec, 0xff")
e(f"buffer_load_dword v29, v28, {SWS}, s45 offen sc1")
e("s_mov_b32 exec_lo, -1")
e(f"buffer_store_dwordx4 v[24:27], v9, {SWS}, s60 offen sc1")
e("s_mov_b64 exec, -1")
lab("L_w_norst")
e(f"s_cmp_lt_u32 {sW}, 4")
e("s_cbranch_scc1 L_w_lo")
def uk_dma(rng):
    for i in rng:
        e(f"s_add_u32 m0, s58, {R1 + i*1024}")
        e(f"s_add_u32 s45, s57, {i*(1024 if P['x_wc'] else 32768)}")
        dma(10 if P["x_wc"] else 12 + (i & 3), SB, "s45", "nt")
uk_dma(range(0 if P["x_s2"] else 8 - P["uk_late"]))
lab("L_w_lo")
srd(24, 4194304); srd(32, 1409024)
if WPF: srd(28, 4194304); srd(36, 1409024)
def consts():
    e(f"s_mov_b32 {sPK0}, 0x07060501")
    e(f"s_mov_b32 {sPK1}, 0x07060502")
    e(f"s_mov_b32 {sPK2}, 0x07060503")
    e(f"s_mov_b32 {sUP}, 0x0c04000c")
    e("s_mov_b32 s54, 0x00030003")
    e("s_mov_b32 s55, 0x00030003")
consts()
if P["w_ckv"]:
    srd(40, 8388608)
    e(f"s_lshl_b32 s99, {sX}, 20")
    e(f"s_lshr_b32 s45, {sR}, 1")
    e("s_lshl_b32 s45, s45, 17")
    e("s_add_u32 s99, s99, s45")
    e(f"s_and_b32 s45, {sR}, 1")
    e("s_lshl_b32 s45, s45, 15")
    e("s_add_u32 s99, s99, s45")
    e("s_add_u32 s99, s99, s58")
    e("s_add_u32 s99, s99, 0x10000")
def ckv_pf():
    e(f"buffer_load_dword v29, v28, {SO}, s99 offen {'nt' if P['nt_ckv'] else ''}")
c("LDS / hand-off addresses")
e("v_lshrrev_b32 v4, 2, v2")
e("v_and_b32 v5, 3, v2")
e("v_and_b32 v30, 1, v3")
e("v_lshl_or_b32 v30, v30, 2, v4")
e(f"v_xor_b32 v30, {sW}, v30")
e("v_lshlrev_b32 v30, 5, v30")
e("v_lshl_add_u32 v30, v5, 3, v30")
e("v_lshl_add_u32 v31, v3, 3, v4")
e("v_lshl_add_u32 v16, v31, 8, v30")
e("v_and_b32 v32, 1, v2")
e(f"v_mul_u32_u24 v17, {XNS}, v32")
e(f"s_lshl_b32 s45, {sJ}, 8")
e("v_lshl_add_u32 v18, v3, 4, v17")
e("v_add_u32 v18, s45, v18")
e(f"v_mul_u32_u24 v19, {QLS}, v32")
e("v_lshl_add_u32 v33, v3, 4, v19")
e("v_lshlrev_b32 v34, 5, v3")
e("v_lshl_add_u32 v34, v2, 4, v34")
e("v_lshrrev_b32 v36, 1, v1")
e("v_lshl_add_u32 v37, v36, 3, v19")
e("v_xor_b32 v40, v2, v3")
e("v_lshlrev_b32 v40, 4, v40")
e("v_lshl_add_u32 v40, v2, 8, v40")
e(f"s_lshl_b32 s45, {sW}, 12")
e("v_add_u32 v40, s45, v40")
e("v_xor_b32 v41, 0x40, v40")
e("v_xor_b32 v42, 0x80, v40")
e("v_xor_b32 v43, 0xc0, v40")
e(f"s_lshl_b32 s45, {sW}, 5")
e("v_lshl_add_u32 v39, v3, 3, s45")
e("v_lshl_add_u32 v44, v2, 8, v39")
e("v_add_u32 v45, v19, v39")
e(f"s_lshl_b32 s45, {sW}, 7")
e("s_add_u32 s62, s62, s45")
e(f"s_lshl_b32 s61, {sH}, 12")
e(f"s_add_u32 s63, s61, {QPB}")
e(f"s_add_u32 s61, s61, {QPA}")
e(f"s_add_u32 s48, s62, {QPA}")
e(f"s_add_u32 s49, s62, {QPB}")
e(f"s_cmp_gt_u32 {sW}, 3")
e("s_cbranch_scc1 L_w_lnend")
c("wave 1 clears the weight table and the retry flag")
e(f"s_cmp_lg_u32 {sW}, 1")
e("s_cbranch_scc1 L_w_noinit")
e("v_lshlrev_b32 v46, 2, v1")
e(f"ds_write_b32 v46, v7 offset:{WT}")
e(f"ds_write_b32 v46, v7 offset:{WT+256}")
lab("L_w_noinit")
e(f"s_cmp_lt_u32 {sW}, 2")
e("s_cbranch_scc1 L_w_noln")
e("s_waitcnt vmcnt(8)")
c("layer norm of row w&1 (bf16 rounding after every step, as the reference does)")
for k in range(4):
    e(f"v_lshlrev_b32 v{48+2*k}, 16, v{20+k}")
    e(f"v_and_b32 v{49+2*k}, 0xffff0000, v{20+k}")
e("v_add_f32 v56, v48, v49")
e("v_add_f32 v57, v50, v51")
e("v_add_f32 v58, v52, v53")
e("v_add_f32 v59, v54, v55")
e("v_add_f32 v56, v56, v57")
e("v_add_f32 v58, v58, v59")
e("v_add_f32 v56, v56, v58")
row_allreduce16("add", 56)
swap_reduce("add", 56, 57, 16)
swap_reduce("add", 56, 57, 32)
e("v_mul_f32 v56, 0x3b000000, v56")
for k in range(8):
    e(f"v_sub_f32 v{60+k}, v{48+k}, v56")
e("v_mul_f32 v57, v60, v60")
for k in range(1, 8):
    e(f"v_fmac_f32 v57, v{60+k}, v{60+k}")
row_allreduce16("add", 57)
swap_reduce("add", 57, 58, 16)
swap_reduce("add", 57, 58, 32)
e("v_mul_f32 v57, 0x3b000000, v57")
round_bf16(56)
round_bf16(57)
e("v_add_f32 v57, 0x3727c5ac, v57")
round_bf16(57)
e("v_sqrt_f32 v57, v57")
e("s_nop 0")
round_bf16(57)
e("v_rcp_f32 v57, v57")
for k in range(8):
    e(f"v_sub_f32 v{60+k}, v{48+k}, v56")
for k in range(4):
    e(f"v_cvt_pk_bf16_f32 v{48+k}, v{60+2*k}, v{61+2*k}")
for k in range(4):
    e(f"v_lshlrev_b32 v{60+2*k}, 16, v{48+k}")
    e(f"v_and_b32 v{61+2*k}, 0xffff0000, v{48+k}")
for k in range(8):
    e(f"v_mul_f32 v{60+k}, v{60+k}, v57")
for k in range(4):
    e(f"v_cvt_pk_bf16_f32 v{48+k}, v{60+2*k}, v{61+2*k}")
e(f"s_and_b32 s45, {sW}, 1")
e(f"s_mul_i32 s45, s45, {XNS}")
e("v_add_u32 v56, s45, v8")
e(f"ds_write_b128 v56, v[48:51] offset:{XN}")
lab("L_w_noln")
e(f"s_cmp_eq_u32 {sW}, 0")
e("s_cbranch_scc1 L_w_w0")
e("s_waitcnt vmcnt(0)")
lab("L_w_w0")
e("s_waitcnt vmcnt(2)")
lab("L_w_lnend")
e("s_waitcnt lgkmcnt(0)")
e(f"s_add_u32 {sTAG}, {sTAG}, 1")
stamp(2)
if P["x_s2"]:
    e("s_waitcnt vmcnt(0)")
    e("s_barrier")
    e("s_branch L_w_noqa")
if P["x_exit"] == 1:
    e("s_waitcnt vmcnt(0)")
    stamp(3)
    e("s_branch L_w_fin")
e("s_barrier")
c("P1a: partial q over my m quarter, d tile w")
for s in range(4):
    rd128(56 + 4*s, 18, XN + s*64)
    tr(72 + 4*s, 16, R0 + s*8192)
    tr(74 + 4*s, 16, R0 + s*8192 + 1024)
for s in range(4):
    e(f"s_waitcnt lgkmcnt({9 - 3*s})")
    mfma(88, 72 + 4*s, 56 + 4*s, None if s == 0 else 88)
e("s_nop 7")
pack_granule(92, 88)
e(f"s_mov_b64 exec, {sM2}")
if not P["x_noloc"]: e(f"buffer_store_dwordx4 v[92:95], v34, {SWS}, s48 offen")
if P["uk_late"] or P["h0_new"]:
    c("stores do not pass older loads: the partial q leaves before the rest of w_uk (already in L2) is fetched")
    stamp(3)
    e(f"s_cmp_gt_u32 {sW}, 3")
    e("s_cbranch_scc1 L_w_h0")
    e(f"buffer_store_dwordx4 v[92:95], v34, {SWS}, s49 offen sc1")
    e(f"s_cmp_lg_u32 {sW}, 0")
    e("s_cbranch_scc1 L_w_h0done")
    e("s_lshl_b32 s45, s59, 7")
    e(f"s_add_u32 s45, s45, {FLG}")
    e(f"v_mov_b32 v6, {sTAG}")
    e("s_mov_b64 exec, 1")
    e("s_waitcnt vmcnt(2)")
    e(f"buffer_store_dword v6, v7, {SWS}, s45 offen sc1")
    e("s_branch L_w_h0done")
    lab("L_w_h0")
    e("s_mov_b64 exec, -1")
    if P["uk_sleep"]: e(f"s_sleep {P['uk_sleep']}")
    uk_dma(range(8 - P["uk_late"], 8))
    e(f"s_cmp_eq_u32 {sW}, 7")
    e("s_cbranch_scc1 L_w_h0p")
    e(f"s_mov_b64 exec, {sM2}")
    e(f"buffer_store_dwordx4 v[92:95], v34, {SWS}, s49 offen sc1")
    e(f"s_waitcnt vmcnt({1 if P['uk_late'] else 2})")
    stamp(13)
    e("s_branch L_w_h0done")
    lab("L_w_h0p")
    e(f"s_waitcnt vmcnt({P['h0_k'] + (0 if P['uk_late'] else 1)})")
    e(f"s_mov_b32 {sCNT}, 0")
    e("s_mov_b32 s45, s61")
    lab("L_h0_ld")
    for i in range(4):
        e(f"buffer_load_dwordx4 v[{96+4*i}:{99+4*i}], v8, {SWS}, s45 offen offset:{i*1024} sc1")
    e(f"s_add_u32 {sCNT}, {sCNT}, 1")
    e(f"s_cmp_lg_u32 {sCNT}, 6")
    e("s_cbranch_scc1 L_h0_nb")
    e(f"s_mov_b64 exec, {sM2}")
    e(f"buffer_store_dwordx4 v[92:95], v34, {SWS}, s49 offen sc1")
    e("s_mov_b64 exec, -1")
    lab("L_h0_nb")
    e(f"s_cmp_gt_u32 {sCNT}, {P['localrounds']}")
    e(f"s_cselect_b32 s45, {sCNT}, 0")
    e("s_and_b32 s45, s45, 3")
    e("s_cmp_eq_u32 s45, 3")
    e("s_cselect_b32 s45, s63, s61")
    e("s_waitcnt vmcnt(0)")
    for i in range(4):
        e(f"v_xor_b32 v{112+i}, {sTAG}, v{99+4*i}")
    e("v_or3_b32 v112, v112, v113, v114")
    e("v_or_b32 v112, v112, v115")
    e("v_cmp_ne_u32 vcc, 0, v112")
    e("s_cbranch_vccz L_h0_ok")
    e(f"s_cmp_lt_u32 {sCNT}, {TMO}")
    e("s_cbranch_scc1 L_h0_ld")
    lab("L_h0_ok")
    if P["stamps"]: e(f"s_mov_b32 s94, {sCNT}")
    e(f"s_cmp_ge_u32 {sCNT}, 6")
    e("s_cbranch_scc1 L_h0_bdone")
    e(f"s_mov_b64 exec, {sM2}")
    e(f"buffer_store_dwordx4 v[92:95], v34, {SWS}, s49 offen sc1")
    e("s_mov_b64 exec, -1")
    lab("L_h0_bdone")
else:
    if P["h0_b"]:
        e(f"s_cmp_eq_u32 {sW}, 7")
        e("s_cbranch_scc1 L_w_h0p")
    e(f"buffer_store_dwordx4 v[92:95], v34, {SWS}, s49 offen sc1")
    stamp(3)
    e(f"s_cmp_gt_u32 {sW}, 3")
    e("s_cbranch_scc1 L_w_h0")
    if P["w_ckv"] in (2, 3):
        e("s_mov_b64 exec, -1")
        if P["w_ckv"] == 3:
            e(f"s_cmp_lt_u32 {sW}, 2")
            e("s_cbranch_scc1 L_w_ck2")
        ckv_pf()
        lab("L_w_ck2")
    e(f"s_cmp_lg_u32 {sW}, 0")
    e("s_cbranch_scc1 L_w_h0done")
    e("s_lshl_b32 s45, s59, 7")
    e(f"s_add_u32 s45, s45, {FLG}")
    e(f"v_mov_b32 v6, {sTAG}")
    e("s_mov_b64 exec, 1")
    e(f"s_waitcnt vmcnt({(1 if P['x_noloc'] else 2) + (P['w_ckv'] == 2)})")
    e(f"buffer_store_dword v6, v7, {SWS}, s45 offen sc1")
    e("s_branch L_w_h0done")
    lab("L_w_h0")
    e("s_mov_b64 exec, -1")
    e(f"s_cmp_eq_u32 {sW}, 7")
    e("s_cbranch_scc1 L_w_h0p")
    e(f"s_waitcnt vmcnt({1 if P['x_noloc'] else 2})")
    e("s_branch L_w_h0done")
    lab("L_w_h0p")
    if P["h0_b"]:
        e("s_mov_b64 exec, -1")
        stamp(3)
        if P["h0_sleep"]: e(f"s_sleep {P['h0_sleep']}")
    e(f"s_waitcnt vmcnt({(1 if P['x_noloc'] or P['h0_b'] else 2) + P['h0_k']})")
    def ckv_pf4_():
        e("s_sub_u32 s99, s99, s58")
        for k in range(4):
            ckv_pf()
            if k < 3: e("s_add_u32 s99, s99, 8192")
        return 4
    def h0_first():
        e(f"s_mov_b64 exec, {sM2}")
        e(f"buffer_store_dwordx4 v[92:95], v34, {SWS}, s49 offen sc1")
        e("s_mov_b64 exec, -1")
        return 1 + (ckv_pf4_() if P["w_ckv"] == 4 else 0)
    dual_poll4("h0", 96, [8, 8, 8, 8], "s61", "s63", offs=(0, 1024, 2048, 3072), first=h0_first if P["h0_b"] else ckv_pf4_ if P["w_ckv"] == 4 else None)
stamp(4)
sum4(96)
e("v_cvt_pk_bf16_f32 v96, v96, v97")
e("v_cvt_pk_bf16_f32 v97, v98, v99")
e(f"ds_write_b64 v37, v[96:97] offset:{QL}")
lab("L_w_h0done")
e("s_mov_b64 exec, -1")
e("s_waitcnt lgkmcnt(0)")
e("s_barrier")
c("P1b: absorbed query for my c quarter, c tile w")
for s in range(4):
    rd128(56 + 4*s, 33, QL + s*64)
    rd128(72 + 4*s, 40 + s, R1)
if P["w_ckv"] in (1, 3):
    e(f"s_cmp_lt_u32 {sW}, 4")
    e("s_cbranch_scc1 L_w_nockv")
    if P["w_ckv"] == 3:
        e(f"s_cmp_gt_u32 {sW}, 5")
        e("s_cbranch_scc1 L_w_nockv")
    ckv_pf()
    lab("L_w_nockv")
for s in range(4):
    e(f"s_waitcnt lgkmcnt({6 - 2*s})")
    mfma(88, 72 + 4*s, 56 + 4*s, None if s == 0 else 88)
e("s_nop 7")
e("v_cvt_pk_bf16_f32 v92, v88, v89")
e("v_cvt_pk_bf16_f32 v93, v90, v91")
e(f"s_mov_b64 exec, {sM2}")
e(f"ds_write_b64 v44, v[92:93] offset:{QST}")
e("s_mov_b64 exec, -1")
e("s_waitcnt lgkmcnt(0)")
e("s_barrier")
e(f"s_cmp_lg_u32 {sW}, 0")
e("s_cbranch_scc1 L_w_noqa")
e("s_mov_b32 exec_hi, 0")
rd128(92, 8, QST)
e("s_waitcnt lgkmcnt(0)")
e(f"buffer_store_dwordx4 v[92:95], v9, {SWS}, s60 offen sc1")
e("s_mov_b64 exec, -1")
if P["w_ckv"] == 5:
    e("s_sub_u32 s99, s99, s58")
    for k in range(4):
        ckv_pf()
        if k < 3: e("s_add_u32 s99, s99, 8192")
lab("L_w_noqa")
stamp(5)
if P["x_exit"] == 2: e("s_branch L_w_fin")
c("second stream: waves 0-3 w_uv, waves 4-7 w1")
def wthr():
    if P["w_win"] < 63: e(f"s_waitcnt vmcnt({P['w_win']})")
def t0x(dst):
    e(f"s_mul_i32 {dst}, {sX}, 11")
    e(f"s_sub_u32 s45, {sX}, 6")
    e("s_max_i32 s45, s45, 0")
    e(f"s_sub_u32 {dst}, {dst}, s45")
e("s_lshl_b32 s98, s59, 11")
e(f"s_add_u32 s98, s98, {HPA}")
if P["s2_gate"]:
    c("pacing only: let the c_kv stream of this group finish first")
    e(f"s_cmp_lg_u32 {sW}, 1")
    e("s_cbranch_scc1 L_w_gate")
    e(f"s_lshl_b32 s45, {sX}, 7")
    e(f"s_add_u32 s45, s45, {CKF}")
    e("v_lshlrev_b32 v46, 2, v2")
    e(f"s_mov_b32 {sCNT}, 0")
    lab("L_w_gl")
    e(f"buffer_load_dword v47, v46, {SWS}, s45 offen sc1")
    e(f"s_add_u32 {sCNT}, {sCNT}, 1")
    e("s_waitcnt vmcnt(0)")
    e(f"v_cmp_ne_u32 vcc, {sTAG}, v47")
    e("s_cbranch_vccz L_w_gate")
    e(f"s_cmp_lt_u32 {sCNT}, {P['s2_gate']}")
    e("s_cbranch_scc1 L_w_gl")
    lab("L_w_gate")
    e("s_barrier")
if P["w_nat"]:
    c("c_kv first: the second weight stream starts when my share of it is in L2")
    e("s_waitcnt vmcnt(0)")
    e("s_barrier")
if P["w2_delay"]: e(f"s_sleep {P['w2_delay']}")
e(f"s_cmp_gt_u32 {sW}, 3")
e("s_cbranch_scc1 L_w_s2hi")
e("v_xor_b32 v11, 0x80, v10")
for i in range(0 if P["x_s2"] & 2 else 8):
    e(f"s_add_u32 m0, s58, {R0 + i*1024}")
    e(f"s_add_u32 s45, s57, {i*32768}")
    dma(10 + ((i >> 1) & 1), SC, "s45", "nt")
    wthr()
e("s_branch L_w_s2done")
lab("L_w_s2hi")
e(f"s_cmp_lg_u32 {sW}, 6")
e("s_cbranch_scc1 L_w_nopre")
e("s_lshl_b32 s45, s59, 10")
e(f"s_add_u32 s45, s45, {CPA}")
e("s_mov_b64 exec, 0xff")
e(f"buffer_load_dword v29, v28, {SWS}, s45 offen sc1")
e("s_mov_b64 exec, 0xfff")
e(f"buffer_load_dword v29, v28, {SWS}, s98 offen sc1")
e("s_mov_b64 exec, -1")
if P["w_slow"]:
    e("v_and_b32 v46, 31, v1")
    e("v_lshlrev_b32 v46, 13, v46")
    e("v_lshrrev_b32 v47, 5, v1")
    e("v_lshl_add_u32 v46, v47, 7, v46")
    e(f"s_lshl_b32 s45, {sR}, 18")
    e(f"s_lshl_b32 s47, {sX}, 10")
    e("s_add_u32 s45, s45, s47")
    e(f"buffer_load_dword v29, v46, {SC}, s45 offen offset:256")
lab("L_w_nopre")
t0x("s46")
e(f"s_mul_i32 s45, {sR}, {32*2752}")
e("s_lshl_b32 s48, s46, 5")
e("s_add_u32 s45, s45, s48")
e("s_lshr_b32 s48, s58, 7")
e("v_add_u32 v46, s48, v1")
e("s_movk_i32 s47, 2400")
e("s_lshr_b32 s48, s58, 3")
for i in range(0 if P["x_s2"] & 4 else 3):
    if i == 2:
        e(f"s_cmp_eq_u32 {sW}, 7")
        e("s_cbranch_scc1 L_w_w1done")
    e("v_mul_u32_u24 v47, 2979, v46")
    e("v_lshrrev_b32 v47, 16, v47")
    e("v_lshlrev_b32 v48, 4, v46")
    e("v_mad_u32_u24 v47, v47, s47, v48")
    e(f"s_add_u32 m0, s48, {W1L + i*4096}")
    e("v_add_u32 v46, 0x100, v46")
    dma(47, SE, "s45", "nt")
    wthr()
lab("L_w_w1done")
def wo_pf(done):
    c("pull a contiguous 1/16 of this XCD group's w_o / w2 rows into L2 (one lane per 128-B line)")
    e(f"s_lshl_b32 s45, {sX}, 19")
    e(f"s_lshl_b32 s48, {sR}, 15")
    e("s_add_u32 s45, s45, s48")
    e("s_add_u32 s45, s45, s58")
    if not P["x_s2"] & 8: e(f"buffer_load_dword v29, v28, {SD}, s45 offen {'nt' if P['pf_nt'] else ''}")
    e(f"s_cmp_gt_u32 {sW}, 5")
    e(f"s_cbranch_scc1 {done}")
    e("s_lshl_b32 s45, s46, 14")
    e(f"s_mul_i32 s48, {sR}, 12288")
    e("s_add_u32 s45, s45, s48")
    e("s_add_u32 s45, s45, s58")
    e(f"s_cmp_eq_u32 {sW}, 5")
    e("s_cselect_b32 exec_hi, 0, -1")
    if not P["x_s2"] & 16: e(f"buffer_load_dword v29, v28, {SF}, s45 offen {'nt' if P['pf_nt'] else ''}")
    e("s_mov_b64 exec, -1")
if P["w_pf"] == 1: wo_pf("L_w_s2done")
lab("L_w_s2done")
e(f"v_add_u32 v53, {OIN}, v16")
e("v_lshrrev_b32 v51, 3, v0")
e("v_and_b32 v50, 7, v0")
e("v_lshlrev_b32 v50, 4, v50")
e("v_lshl_add_u32 v50, v51, 8, v50")
e(f"v_add_u32 v50, {OIN}, v50")
e("v_lshlrev_b32 v51, 2, v51")
e(f"v_mul_u32_u24 v54, {WTS}, v32")
e("v_lshl_add_u32 v54, v3, 4, v54")
e("v_lshlrev_b32 v55, 1, v3")
e("v_xor_b32 v55, v2, v55")
e(f"s_and_b32 s45, {sW}, 1")
e("s_lshl_b32 s45, s45, 3")
e("v_xor_b32 v55, s45, v55")
e("v_lshlrev_b32 v55, 4, v55")
e("v_lshl_add_u32 v55, v3, 8, v55")
e("s_lshl_b32 s101, s59, 14")
e(f"s_lshl_b32 s45, {sW}, 11")
e("s_add_u32 s101, s101, s45")
e(f"s_add_u32 s101, s101, {OP}")
e(f"s_add_u32 s57, s45, {OIN}")
c("FFN first layer: partial sums over my 32 rows of w1, tiles w and w+8")
e("v_lshl_add_u32 v64, v3, 2, v4")
e("v_mul_u32_u24 v64, 352, v64")
e("v_lshl_add_u32 v64, v5, 3, v64")
e(f"s_lshl_b32 s48, {sW}, 5")
e(f"s_add_u32 s48, s48, {W1L}")
e("v_add_u32 v64, s48, v64")
e(f"s_lshl_b32 s48, {sR}, 6")
e("v_lshl_add_u32 v65, v3, 3, v17")
e("v_add_u32 v65, s48, v65")
e(f"s_lshl_b32 s48, {sW}, 7")
e("s_add_u32 s48, s48, s98")
e(f"s_add_u32 s49, s48, {HPB-HPA}")
if P["ffn_early"]:
    e(f"s_cmp_lt_u32 {sW}, 4")
    e("s_cbranch_scc1 L_w_w1in")
e("s_waitcnt vmcnt(0)")
if not P["ffn_early"]: stamp(6)
lab("L_w_w1in")
if P["x_s2"] or P["x_exit"] == 3: e("s_branch L_w_fin")
e("s_barrier")
e(f"ds_read_b64 v[56:57], v65 offset:{XN}")
e(f"ds_read_b64 v[58:59], v65 offset:{XN+32}")
tr(72, 64, 0); tr(74, 64, 5632)
tr(76, 64, 256); tr(78, 64, 5632 + 256)
e("s_waitcnt lgkmcnt(2)")
mfma(88, 72, 56, None)
e("s_waitcnt lgkmcnt(0)")
mfma(84, 76, 56, None)
e("s_nop 6")
pack_granule(92, 88)
e(f"s_mov_b64 exec, {sM2}")
if not P["x_noloc"]: e(f"buffer_store_dwordx4 v[92:95], v34, {SWS}, s48 offen")
e(f"buffer_store_dwordx4 v[92:95], v34, {SWS}, s49 offen sc1")
e(f"s_cmp_gt_u32 {sW}, 2")
e("s_cbranch_scc1 L_w_ffn1done")
pack_granule(80, 84)
if not P["x_noloc"]: e(f"buffer_store_dwordx4 v[80:83], v34, {SWS}, s48 offen offset:1024")
e(f"buffer_store_dwordx4 v[80:83], v34, {SWS}, s49 offen offset:1024 sc1")
lab("L_w_ffn1done")
e("s_mov_b64 exec, -1")
if P["w_pf"] == 3:
    e(f"s_cmp_lt_u32 {sW}, 4")
    e("s_cbranch_scc1 L_w_pfdone")
    wo_pf("L_w_pfdone")
    lab("L_w_pfdone")
if P["o_pre"]:
    e(f"s_cmp_gt_u32 {sW}, 1")
    e("s_cbranch_scc1 L_w_nopre2")
    e("s_lshl_b32 s45, s59, 14")
    e(f"s_lshl_b32 s46, {sW}, 13")
    e("s_add_u32 s45, s45, s46")
    e(f"s_add_u32 s45, s45, {OP}")
    e(f"buffer_load_dword v29, v28, {SWS}, s45 offen sc1")
    lab("L_w_nopre2")
if P["ffn_early"]:
    e(f"s_cmp_eq_u32 {sW}, 3")
    e("s_cbranch_scc1 L_w_uv2")
    e("s_waitcnt vmcnt(4)")
    e("s_branch L_w_uvin")
    lab("L_w_uv2")
    e("s_waitcnt vmcnt(2)")
    lab("L_w_uvin")
    stamp(6)
    e("s_barrier")
if P["pf_split"]:
    e(f"s_cmp_lt_u32 {sW}, 4")
    e("s_cbranch_scc1 L_w_pfdone")
    e(f"s_cmp_gt_u32 {sW}, 5")
    e("s_cbranch_scc1 L_w_pfo")
    e("s_lshl_b32 s45, s46, 14")
    e(f"s_mul_i32 s48, {sR}, 12288")
    e("s_add_u32 s45, s45, s48")
    e(f"s_and_b32 s48, {sW}, 1")
    e("s_mul_i32 s48, s48, 6144")
    e("s_add_u32 s45, s45, s48")
    e(f"buffer_load_dword v29, v28, {SF}, s45 offen")
    e("s_branch L_w_pfdone")
    lab("L_w_pfo")
    e(f"s_cmp_lt_u32 {sW}, {(8, 8, 7, 6)[P['pf_split']]}")
    e("s_cbranch_scc1 L_w_pfdone")
    e(f"s_lshl_b32 s45, {sX}, 19")
    e(f"s_lshl_b32 s48, {sR}, 15")
    e("s_add_u32 s45, s45, s48")
    e("s_add_u32 s45, s45, s58")
    e(f"buffer_load_dword v29, v28, {SD}, s45 offen")
    lab("L_w_pfdone")
c("weight fragments into registers")
for s in range(4):
    tr(96 + 4*s, 16, R0 + s*8192)
    tr(98 + 4*s, 16, R0 + s*8192 + 1024)
if P["h2w"]:
    ML = XN + 5760
    e(f"s_lshr_b32 s45, {sH}, 4")
    e("s_lshl_b32 s45, s45, 16")
    if P["st_x"]:
        e(f"s_and_b32 s46, {sX}, 3")
        e("s_lshl_b32 s46, s46, 8")
        e("s_add_u32 s48, s45, s46")
        e(f"s_lshl_b32 s46, {sJ}, 6")
        e("s_add_u32 s48, s48, s46")
        e(f"s_and_b32 s46, {sH}, 3")
        e("s_lshl_b32 s46, s46, 4")
        e("s_add_u32 s48, s48, s46")
    else:
        e(f"s_and_b32 s46, {sH}, 15")
        e("s_lshl_b32 s46, s46, 4")
        e("s_add_u32 s48, s45, s46")
        e(f"s_lshl_b32 s46, {sJ}, 8")
        e("s_add_u32 s48, s48, s46")
    e(f"s_add_u32 s99, s48, {ST}")
    e("v_lshlrev_b32 v62, 8, v51")
    if P["o_swz"]:
        e(f"s_lshl_b32 s45, {sJ}, 1")
        e(f"s_xor_b32 s45, s45, {sH}")
        e("s_and_b32 s45, s45, 7")
        e("s_lshl_b32 s45, s45, 10")
        e("v_xor_b32 v62, s45, v62")
    e("v_lshlrev_b32 v63, 1, v51")
    e("v_mov_b32 v68, 1")
    e("s_mov_b32 s58, 1")
    e("s_mov_b32 m0, s57")
    c("statistics of the 8 key splits (one XCD group) whose rows this wave fetches")
    stamp(7)
    if P["hint"]:
        c("a line that is read before it is written slows the write down: back off until the producers are about done")
        e(f"s_lshr_b32 s46, {sH}, 4")
        e("s_lshl_b32 s46, s46, 13")
        e(f"s_add_u32 s46, s46, {HINT}")
        e("v_lshlrev_b32 v60, 5, v51")
        e(f"s_mov_b32 {sCNT}, 0")
        lab("L_hint")
        e(f"buffer_load_dword v61, v60, {SWS}, s46 offen sc1")
        e(f"s_add_u32 {sCNT}, {sCNT}, 1")
        e("s_waitcnt vmcnt(0)")
        e(f"v_cmp_ne_u32 vcc, {sTAG}, v61")
        e("s_cbranch_vccz L_hint_ok")
        e(f"s_cmp_lt_u32 {sCNT}, {TMO}")
        e("s_cbranch_scc1 L_hint")
        lab("L_hint_ok")
        stamp(12)
        e(f"s_cmp_eq_u32 {sCNT}, 1")
        e("s_cbranch_scc1 L_hint_go")
        e(f"s_sleep {P['hint_d']}")
        lab("L_hint_go")
    if P["hint"] and P["hint_spec"]:
        e(f"buffer_load_dwordx4 v[56:59], v62, {SWS}, s99 offen sc1")
        dma(55, SWS, "s101", "sc1")
        dma(55, SWS, "s101", "sc1", 1024)
        e("s_waitcnt vmcnt(2)")
        e(f"v_cmp_ne_u32 vcc, {sTAG}, v59")
        e("s_cbranch_vccz L_st_in")
    dual_poll("st", 56, 62, "s99", "s99", bo=P["bo_st"])
    dma(55, SWS, "s101", "sc1")
    dma(55, SWS, "s101", "sc1", 1024)
    lab("L_st_in")
    stamp(8)
    e(f"ds_write_b64 v63, v[56:57] offset:{ML}")
    e("s_mov_b64 exec, 1")
    e(f"ds_add_rtn_u32 v69, v7, v68 offset:{FLAGL + 4}")
    e("s_mov_b64 exec, -1")
    e("v_lshlrev_b32 v63, 3, v1")
    e(f"ds_read_b64 v[64:65], v63 offset:{ML}")
    e("s_waitcnt lgkmcnt(0)")
    e("v_readfirstlane_b32 s45, v69")
    e("s_nop 1")
    e("s_cmp_lg_u32 s45, 7")
    e("s_cbranch_scc1 L_w_owait")
    c("the wave that is last: split weights exp2(m - M) / L per batch (lanes 0-31 / 32-63)")
    e("v_mov_b32 v60, v64")
    row_allreduce16("max", 60)
    swap_reduce("max", 60, 61, 16)
    e("v_sub_f32 v60, v64, v60")
    e("v_exp_f32 v60, v60")
    e("s_nop 0")
    e("v_mul_f32 v61, v60, v65")
    row_allreduce16("add", 61)
    swap_reduce("add", 61, 63, 16)
    e("v_rcp_f32 v61, v61")
    e("v_lshrrev_b32 v63, 5, v1")
    e(f"v_mul_u32_u24 v63, {WTS}, v63")
    e("v_mul_f32 v60, v60, v61")
    e("v_lshl_add_u32 v63, v1, 1, v63")
    e("v_cvt_pk_bf16_f32 v60, v60, v60")
    e(f"ds_write_b16 v63, v60 offset:{WT}")
    e("s_branch L_w_owait")
    lab("L_w_oretry")
    e("s_add_u32 s58, s58, 1")
    dma(55, SWS, "s101", "sc1")
    dma(55, SWS, "s101", "sc1", 1024)
    lab("L_w_owait")
    e("s_waitcnt vmcnt(0) lgkmcnt(0)")
    stamp(9)
    e("s_barrier")
    c("combine the 2x32 key splits for c tile w; check my rows against their checksums")
    for kk in range(2):
        rd128(60 + 4*kk, 54, WT + kk*64)
        tr(72 + 4*kk, 53, kk*8192)
        tr(74 + 4*kk, 53, kk*8192 + 1024)
    rd128(80, 50, 0)
    rd128(84, 50, 128)
    e("s_waitcnt lgkmcnt(5)")
    mfma(88, 72, 60, None)
    e("s_waitcnt lgkmcnt(2)")
    mfma(88, 76, 64, 88)
    e("v_mov_b32 v68, s58")
    e("s_waitcnt lgkmcnt(0)")
    e("v_add3_u32 v80, v80, v81, v82")
    e("v_add3_u32 v84, v84, v85, v86")
    e("v_add3_u32 v80, v80, v83, v87")
    e("v_add_u32 v80, v80, v84")
    e("s_nop 1")
    e("v_add_u32_dpp v80, v80, v80 quad_perm:[1,0,3,2] row_mask:0xf bank_mask:0xf")
    e("v_cvt_pk_bf16_f32 v92, v88, v89")
    e("v_cvt_pk_bf16_f32 v93, v90, v91")
    e("v_add_u32_dpp v80, v80, v80 quad_perm:[2,3,0,1] row_mask:0xf bank_mask:0xf")
    e(f"s_mov_b64 exec, {sM2}")
    e(f"ds_write_b64 v45, v[92:93] offset:{QL}")
    e("s_mov_b64 exec, -1")
    e("v_add_u32_dpp v80, v80, v80 row_half_mirror row_mask:0xf bank_mask:0xf")
    e("s_nop 0")
    e("v_cmp_ne_u32 vcc, v80, v58")
    e("s_and_b64 exec, exec, vcc")
    e("s_cbranch_execz L_w_onan")
    e(f"ds_max_u32 v7, v68 offset:{FLAGL}")
else:
    e(f"s_cmp_lg_u32 {sW}, 7")
    e("s_cbranch_scc1 L_w_nopoll")
    c("wave 7: wait for the 64 softmax statistics of my head")
    e(f"s_lshr_b32 s45, {sH}, 4")
    e("s_lshl_b32 s45, s45, 16")
    e(f"s_and_b32 s46, {sH}, 15")
    e("s_lshl_b32 s46, s46, 4")
    e("s_add_u32 s48, s45, s46")
    e(f"s_lshl_b32 s46, {sJ}, 8")
    e("s_add_u32 s48, s48, s46")
    e(f"s_add_u32 s48, s48, {ST}")
    e("v_lshlrev_b32 v62, 10, v1")
    stamp(7)
    dual_poll("st", 56, 62, "s48", "s48")
    stamp(8)
    def split_weights():
        c("split weights: exp2(m - M) / L per batch (lanes 0-31 / 32-63)")
        e("v_mov_b32 v60, v56")
        row_allreduce16("max", 60)
        swap_reduce("max", 60, 61, 16)
        e("v_sub_f32 v60, v56, v60")
        e("v_exp_f32 v60, v60")
        e("s_nop 0")
        e("v_mul_f32 v61, v60, v57")
        row_allreduce16("add", 61)
        swap_reduce("add", 61, 63, 16)
        e("v_rcp_f32 v61, v61")
        e("v_lshrrev_b32 v63, 5, v1")
        e(f"v_mul_u32_u24 v63, {WTS}, v63")
        e("v_mul_f32 v60, v60, v61")
        e("v_lshl_add_u32 v63, v1, 1, v63")
        e("v_cvt_pk_bf16_f32 v60, v60, v60")
        e(f"ds_write_b16 v63, v60 offset:{WT}")
    lab("L_w_nopoll")
    e("s_mov_b32 s58, 0")
    e("s_waitcnt lgkmcnt(0)")
    e("s_barrier")
    lab("L_w_oretry")
    e("s_add_u32 s58, s58, 1")
    e("s_mov_b32 m0, s57")
    e("s_nop 0")
    dma(55, SWS, "s101", "sc1")
    dma(55, SWS, "s101", "sc1", 1024)
    e("s_cmp_gt_u32 s58, 1")
    e("s_cbranch_scc1 L_w_owait")
    e(f"s_cmp_lg_u32 {sW}, 7")
    e("s_cbranch_scc1 L_w_owait")
    e("v_lshlrev_b32 v63, 2, v1")
    e(f"ds_write_b32 v63, v58 offset:{CKT}")
    split_weights()
    lab("L_w_owait")
    e("s_waitcnt vmcnt(0) lgkmcnt(0)")
    stamp(9)
    e("s_barrier")
    c("combine the 2x32 key splits for c tile w; check the rows against their checksums")
    for kk in range(2):
        rd128(60 + 4*kk, 54, WT + kk*64)
        tr(72 + 4*kk, 53, kk*8192)
        tr(74 + 4*kk, 53, kk*8192 + 1024)
    rd128(80, 50, 0)
    rd128(84, 50, 128)
    e(f"ds_read_b32 v69, v51 offset:{CKT}")
    e("s_waitcnt lgkmcnt(6)")
    mfma(88, 72, 60, None)
    e("s_waitcnt lgkmcnt(3)")
    mfma(88, 76, 64, 88)
    e("v_mov_b32 v68, s58")
    e("s_waitcnt lgkmcnt(1)")
    e("v_add3_u32 v80, v80, v81, v82")
    e("v_add3_u32 v84, v84, v85, v86")
    e("v_add3_u32 v80, v80, v83, v87")
    e("v_add_u32 v80, v80, v84")
    e("s_nop 1")
    e("v_add_u32_dpp v80, v80, v80 quad_perm:[1,0,3,2] row_mask:0xf bank_mask:0xf")
    e("v_cvt_pk_bf16_f32 v92, v88, v89")
    e("v_cvt_pk_bf16_f32 v93, v90, v91")
    e("v_add_u32_dpp v80, v80, v80 quad_perm:[2,3,0,1] row_mask:0xf bank_mask:0xf")
    e(f"s_mov_b64 exec, {sM2}")
    e(f"ds_write_b64 v45, v[92:93] offset:{QL}")
    e("s_mov_b64 exec, -1")
    e("v_add_u32_dpp v80, v80, v80 row_half_mirror row_mask:0xf bank_mask:0xf")
    e("s_waitcnt lgkmcnt(1)")
    e("v_cmp_ne_u32 vcc, v80, v69")
    e("s_and_b64 exec, exec, vcc")
    e("s_cbranch_execz L_w_onan")
    e(f"ds_max_u32 v7, v68 offset:{FLAGL}")
lab("L_w_onan")
e("s_mov_b64 exec, -1")
e("s_waitcnt lgkmcnt(0)")
e("s_barrier")
e(f"ds_read_b32 v68, v7 offset:{FLAGL}")
for s in range(4):
    rd128(72 + 4*s, 33, QL + s*64)
e(f"s_add_u32 s48, s62, {CPA}")
e(f"s_add_u32 s49, s62, {CPB}")
e("s_waitcnt lgkmcnt(3)")
mfma(88, 96, 72, None)
e("v_readfirstlane_b32 s45, v68")
for s in range(1, 4):
    e(f"s_waitcnt lgkmcnt({3 - s})")
    mfma(88, 96 + 4*s, 72 + 4*s, 88)
e("s_cmp_lg_u32 s45, s58")
e("s_cbranch_scc1 L_w_ook")
e(f"s_cmp_lt_u32 s58, {TMO >> 2}")
e("s_cbranch_scc1 L_w_oretry")
lab("L_w_ook")
e("s_nop 5")
pack_granule(92, 88)
e(f"s_mov_b64 exec, {sM2}")
if not P["x_noloc"]: e(f"buffer_store_dwordx4 v[92:95], v34, {SWS}, s48 offen")
e(f"buffer_store_dwordx4 v[92:95], v34, {SWS}, s49 offen sc1")
stamp(10)
if P["stamps"]: e("s_mov_b32 s86, s58")
lab("L_w_fin")
stamp(14)
dump_stamps()
e("s_endpgm")

lab("L_A")
c("================= attention CU: 16 heads x 128 keys =================")
if P["xmap"]:
    e(f"s_lshr_b32 s45, {sR}, 4")
    e(f"s_lshl1_add_u32 {sX}, {sX}, s45")
    e(f"s_or_b32 {sR}, {sR}, 16")
if P["a_pf"]:
    e("s_load_dwordx2 s[20:21], s[0:1], 24")
    e("s_lshl_b32 s18, 1, 22")
    e("s_lshl_b32 s19, 1, 17")
    srd(20, 4194304)
    e(f"s_and_b32 s45, {sR}, 15")
    e("s_lshl_b32 s45, s45, 18")
    e(f"s_lshl_b32 s46, {sX}, 10")
    e("s_add_u32 s45, s45, s46")
    if P["a_pf"] >= 3:
        c("waves 0-3 pull 32 rows x 1 KB of this group's w_uk columns into L2")
        e("v_lshrrev_b32 v4, 3, v0")
        e("v_lshlrev_b32 v4, 13, v4")
        e("v_and_b32 v5, 7, v0")
        e("v_lshl_add_u32 v4, v5, 7, v4")
    else:
        e("v_and_b32 v4, 31, v0")
        e("v_lshlrev_b32 v4, 13, v4")
        e("v_bfe_u32 v5, v0, 5, 1")
    if P["a_pf"] >= 3: pass
    elif P["a_pf"] == 1:
        e("v_lshl_add_u32 v4, v5, 9, v4")
        e("s_add_u32 s45, s45, 384")
    else:
        e("v_lshl_add_u32 v4, v5, 7, v4")
        e("s_add_u32 s45, s45, 256")
e("s_waitcnt lgkmcnt(0)")
if P["a_pf"] >= 3:
    e(f"s_cmp_gt_u32 {sW}, {3 if P['a_pf'] == 3 else 1}")
    e("s_cbranch_scc1 L_a_nopf")
    e(f"buffer_load_dword v253, v4, {SB}, s45 offen")
    lab("L_a_nopf")
elif P["a_pf"]:
    e(f"s_cmp_gt_u32 {sW}, 1")
    e("s_cbranch_scc1 L_a_nopf")
    e(f"s_cmp_eq_u32 {sW}, 1")
    e("s_cbranch_scc1 L_a_pf1")
    e(f"buffer_load_dword v253, v4, {SA}, s45 offen")
    e("s_branch L_a_nopf")
    lab("L_a_pf1")
    e(f"buffer_load_dword v253, v4, {SB}, s45 offen")
    lab("L_a_nopf")
e("s_load_dwordx2 s[16:17], s[0:1], 8")
e("s_load_dwordx2 s[12:13], s[0:1], 88")
e("s_load_dwordx2 s[28:29], s[0:1], 40")
e("s_load_dwordx2 s[36:37], s[0:1], 64")
e("s_load_dwordx2 s[40:41], s[0:1], 72")
srd(16, 8388608); srd(12, WS_BYTES)
e("v_and_b32 v1, 63, v0")
e("v_mov_b32 v7, 0")
e("v_lshlrev_b32 v8, 4, v1")
e(f"s_sub_u32 s45, {sR}, 16")
e("s_and_b32 s57, s45, 1")
e("s_lshr_b32 s45, s45, 1")
e(f"s_lshl_b32 s58, {sX}, 3")
e("s_add_u32 s58, s58, s45")
e(f"s_lshl_b32 s45, {sW}, 1")
e("v_xor_b32 v10, s45, v1")
e("v_lshlrev_b32 v10, 4, v10")
e("s_xor_b32 s45, s45, 9")
e("v_xor_b32 v11, s45, v1")
e("v_lshlrev_b32 v11, 4, v11")
e("s_lshl_b32 s59, s58, 17")
e("s_lshl_b32 s61, s57, 20")
if P["o_swz"]: e(f"s_lshl_b32 s45, {sX}, 11")
else: e("s_lshl_b32 s45, s58, 8")
e("s_add_u32 s61, s61, s45")
e(f"s_add_u32 s61, s61, {OP}")
e("s_waitcnt lgkmcnt(0)")
stamp(1)
if P["x_s2"]: e("s_branch L_a_fin")
e(f"s_load_dword {sTAG}, s[12:13], 0")
e("v_and_b32 v238, 7, v1")
e("v_lshlrev_b32 v238, 7, v238")
e("s_lshl_b32 s62, s57, 13")
e(f"s_lshl_b32 s45, {sW}, 10")
e("s_add_u32 s62, s62, s45")
e(f"s_add_u32 s62, s62, {FLG}")
def a_loop():
    if P["a_delay"]: e(f"s_sleep {P['a_delay']}")
    c("quarters of the key block in arrival order: mine (HBM), the partner's, then the two the weight CUs help with")
    e("s_lshl_b32 s60, s57, 15")
    e(f"s_lshl_b32 s48, {sW}, 10")
    e("s_add_u32 s60, s60, s48")
    e("s_xor_b32 s46, s60, 0x8000")
    e("s_add_u32 s60, s60, s59")
    e("s_add_u32 s46, s46, s59")
    q = lambda who, hi: [(who, hi, k) for k in range(4)]
    if P["w_ckv_ord"] == 0: order = q("o", 0) + q("p", 0) + q("o", 1) + q("p", 1)
    elif P["w_ckv_ord"] == 2: order = q("o", 0) + q("o", 1) + q("p", 0) + q("p", 1)
    else: order = q("o", 0) + [x for pr in zip(q("o", 1), q("p", 0)) for x in pr] + q("p", 1)
    for i, (who, hi, k) in enumerate(order):
        if i == 12:
            e(f"buffer_load_dword v239, v238, {SWS}, s62 offen sc1")
        e(f"s_add_u32 m0, s48, {(2*hi + (who == 'p'))*32768 + k*8192}")
        e(f"s_add_u32 s45, {'s60' if who == 'o' else 's46'}, {hi*65536 + k*8192}")
        dma(10 + (k & 1), SA, "s45", "nt", shared=True)
        if P["a_win2"] < 63 and P["a_win2"] <= i < (15 if P["a_mid"] == 3 else 12):
            e(f"s_waitcnt vmcnt({P['a_win2']})")
def a_addr():
    c("addresses")
    e("v_lshrrev_b32 v4, 3, v2")
    e("v_and_b32 v5, 7, v2")
    e("v_lshlrev_b32 v12, 2, v4")
    e("v_xor_b32 v5, v5, v12")
    e("v_lshl_or_b32 v5, v5, 1, v4")
    e("v_xor_b32 v5, v5, v3")
    e("v_lshlrev_b32 v5, 4, v5")
    e("v_lshl_add_u32 v5, v2, 10, v5")
    e(f"s_lshl_b32 s45, {sW}, 14")
    e("v_add_u32 v12, s45, v5")
    e("v_xor_b32 v13, 0x40, v12")
    e("v_xor_b32 v14, 0x80, v12")
    e("v_xor_b32 v15, 0xc0, v12")
    e(f"v_add_u32 v20, {A_QL}, v5")
    e("v_xor_b32 v21, 0x40, v20")
    e("v_xor_b32 v22, 0x80, v20")
    e("v_xor_b32 v23, 0xc0, v20")
    e("v_lshrrev_b32 v4, 2, v2")
    e("v_lshl_add_u32 v4, v3, 2, v4")
    e("v_lshrrev_b32 v5, 3, v4")
    e("v_and_b32 v16, 7, v4")
    e("v_lshlrev_b32 v17, 2, v5")
    e("v_xor_b32 v16, v16, v17")
    e("v_lshl_or_b32 v16, v16, 1, v5")
    e("v_bfe_u32 v5, v2, 1, 1")
    e("v_xor_b32 v16, v16, v5")
    e(f"s_and_b32 s45, {sW}, 1")
    e("s_lshl_b32 s45, s45, 3")
    e("v_xor_b32 v16, s45, v16")
    e("v_lshlrev_b32 v16, 4, v16")
    e("v_and_b32 v5, 1, v2")
    e("v_lshl_add_u32 v16, v5, 3, v16")
    e("v_lshl_add_u32 v16, v4, 10, v16")
    e(f"s_lshr_b32 s45, {sW}, 1")
    e("s_lshl_b32 s45, s45, 8")
    e("v_add_u32 v16, s45, v16")
    e("v_xor_b32 v17, 0x20, v16")
    e("v_xor_b32 v18, 0x40, v16")
    e("v_xor_b32 v19, 0x60, v16")
    for tp in range(4):
        e(f"v_add_u32 v{24+tp}, 0x10000, v{16+tp}")
    c("Q write addresses: heads 2w, 2w+1")
    e(f"s_lshl_b32 s45, {sW}, 2")
    e("s_and_b32 s46, s45, 15")
    e(f"s_cmp_gt_u32 {sW}, 3")
    e("s_cselect_b32 s47, 9, 0")
    e("s_xor_b32 s46, s46, s47")
    e("v_xor_b32 v28, s46, v1")
    e("v_lshlrev_b32 v28, 4, v28")
    e(f"s_lshl_b32 s45, {sW}, 11")
    e(f"s_add_u32 s45, s45, {A_QL}")
    e("v_add_u32 v28, s45, v28")
    e("v_xor_b32 v29, 0x20, v28")
    e("v_lshlrev_b32 v30, 2, v2")
    e(f"v_add_u32 v30, {A_MX}, v30")
    e("v_mov_b32 v4, 0xff800000")
    e("ds_write_b32 v30, v4")
    e("v_lshlrev_b32 v242, 2, v1")
    e(f"v_add_u32 v242, {A_SM}, v242")
    e(f"s_lshl_b32 s45, {sW}, 8")
    e("v_add_u32 v254, s45, v242")
    e(f"s_lshr_b32 s45, {sW}, 1")
    e("s_lshl_b32 s45, s45, 10")
    e(f"s_and_b32 s46, {sW}, 1")
    e("s_lshl_b32 s46, s46, 3")
    e("s_add_u32 s45, s45, s46")
    e(f"s_add_u32 s45, s45, {A_PL}")
    e("v_add_u32 v31, s45, v8")
    e(f"v_add_u32 v236, {A_PL}, v8")
    c("O tile t, lane (n, g): 8 bytes at chunk 2t + (g>>1), half g&1 of the 128-B line of head n")
    e("v_lshrrev_b32 v246, 1, v3")
    e("v_and_b32 v4, 7, v2")
    e("v_xor_b32 v246, v246, v4")
    e("v_lshlrev_b32 v246, 4, v246")
    e("v_and_b32 v4, 1, v3")
    e("v_lshl_add_u32 v246, v4, 3, v246")
    e("v_lshl_add_u32 v246, v2, 7, v246")
    e(f"s_lshl_b32 s45, {sW}, 11")
    e(f"s_add_u32 s45, s45, {A_OT}")
    e("v_add_u32 v246, s45, v246")
    e("v_xor_b32 v247, 0x20, v246")
    e("v_xor_b32 v240, 0x40, v246")
    e("v_xor_b32 v241, 0x60, v246")
    e("v_lshrrev_b32 v4, 3, v1")
    e("v_and_b32 v5, 7, v1")
    e("v_xor_b32 v248, v4, v5")
    e("v_lshlrev_b32 v248, 4, v248")
    e("v_lshl_add_u32 v248, v4, 7, v248")
    e("v_add_u32 v248, s45, v248")
    e("v_lshlrev_b32 v237, 16, v4")
    e("v_lshl_add_u32 v237, v5, 4, v237")
    if P["o_swz"]:
        e(f"s_and_b32 s45, {sW}, 6")
        e("s_xor_b32 s45, s45, s58")
        e("s_and_b32 s45, s45, 7")
        e("v_xor_b32 v4, s45, v4")
        e("v_lshl_add_u32 v237, v4, 8, v237")
    e(f"s_lshl_b32 s45, {sW}, 8")
    e(f"s_add_u32 s45, s45, {A_CK}")
    e("v_lshl_add_u32 v249, v1, 2, s45")
    e("v_lshlrev_b32 v9, 9, v3")
    e("v_lshl_add_u32 v9, v2, 2, v9")
    e(f"v_add_u32 v9, {A_CK}, v9")
    e(f"s_lshr_b32 s45, {sW}, 1")
    e("s_lshl_b32 s45, s45, 14")
    e("s_add_u32 s61, s61, s45")
    e(f"s_and_b32 s45, {sW}, 1")
    e("s_lshl_b32 s45, s45, 7")
    e("s_add_u32 s61, s61, s45")
    e(f"s_lshr_b32 s45, {sX}, 2")
    e("s_lshl_b32 s63, s45, 15")
    e("s_lshl_b32 s45, s57, 14")
    e("s_add_u32 s63, s63, s45")
    e(f"s_lshl_b32 s45, {sW}, 11")
    e("s_add_u32 s63, s63, s45")
    e(f"s_add_u32 s63, s63, {QA}")
    e("s_lshl_b32 s96, s57, 6")
    e("s_add_u32 s96, s96, s58")
    e("s_lshl_b32 s96, s96, 10")
    e(f"s_add_u32 s96, s96, {ST}")
    e("s_mov_b32 s97, 0x3e0293ee")
    srd(8, 2048); srd(28, 4194304); srd(36, 1409024); srd(40, 2048)
    consts()
    c("output-projection role: column slice ms = (r-16)>>1, head pair hf = r&1")
    e(f"s_and_b32 s99, {sR}, 15")
    e("s_lshr_b32 s98, s99, 1")
    e("s_lshl_b32 s99, s98, 7")
    e("v_and_b32 v243, 7, v1")
    e("v_and_b32 v244, 1, v3")
    e("v_lshlrev_b32 v244, 1, v244")
    e("v_xor_b32 v243, v243, v244")
    e("v_lshlrev_b32 v243, 4, v243")
    e("v_lshrrev_b32 v244, 3, v1")
    e("v_lshl_add_u32 v243, v244, 10, v243")
    e("v_xor_b32 v244, 64, v243")
    e(f"s_and_b32 s45, {sW}, 1")
    e("s_lshl_b32 s45, s45, 6")
    e("v_xor_b32 v245, s45, v243")
    t0x("s100")
    e("s_lshl_b32 s100, s100, 4")
    e("s_mul_i32 s45, s57, 96")
    e("s_add_u32 s100, s100, s45")
    e(f"s_lshl_b32 s45, {sW}, 3")
    e("s_add_u32 s100, s100, s45")
    e("s_lshl_b32 s100, s100, 10")
    e("s_add_u32 s100, s100, s99")
    e(f"s_lshl_b32 s101, {sX}, 19")
    e("s_lshl_b32 s45, s57, 18")
    e("s_add_u32 s101, s101, s45")
    e(f"s_lshl_b32 s45, {sW}, 15")
    e("s_add_u32 s101, s101, s45")
    e("s_add_u32 s101, s101, s99")
    if P["w_pf"] == 2 and P["pf_n"] == 4 and not P["pf_split"] and not P["pf_late"]:
        c("waves 0-3 pull a contiguous 1/16 of this group's w_o rows into L2 once Q is in (waves 4-7: empty range)")
        e("v_lshlrev_b32 v255, 7, v1")
        e(f"s_and_b32 s46, {sR}, 15")
        e(f"s_lshl_b32 s47, {sX}, 19")
        e("s_lshl_b32 s45, s46, 15")
        e("s_add_u32 s47, s47, s45")
        e(f"s_lshl_b32 s45, {sW}, 13")
        e("s_add_u32 s47, s47, s45")
        e("s_mov_b32 s20, s28")
        e("s_mov_b32 s21, s29")
        e(f"s_cmp_lt_u32 {sW}, 4")
        e("s_cselect_b32 s22, s30, 0")
        e("s_mov_b32 s23, 0x00020000")
    elif P["w_pf"] in (2, 7, 8):
        c("waves 0-3 / 4-5 pull a contiguous 1/16 of this group's w_o / w2 rows into L2 once Q is in; waves 6-7 touch nothing")
        e("v_lshlrev_b32 v255, 7, v1")
        e(f"s_and_b32 s46, {sR}, 15")
        e(f"s_lshl_b32 s47, {sX}, 19")
        e("s_lshl_b32 s45, s46, 15")
        e("s_add_u32 s47, s47, s45")
        e(f"s_lshl_b32 s45, {sW}, 13")
        e("s_add_u32 s47, s47, s45")
        t0x("s48")
        e("s_lshl_b32 s48, s48, 14")
        e("s_mul_i32 s46, s46, 12288")
        e("s_add_u32 s48, s48, s46")
        e(f"s_and_b32 s45, {sW}, 1")
        e("s_mul_i32 s45, s45, 6144")
        e("s_add_u32 s48, s48, s45")
        e(f"s_cmp_lt_u32 {sW}, 4")
        e("s_cselect_b32 s47, s47, s48")
        e("s_cselect_b32 s20, s28, s36")
        e("s_cselect_b32 s21, s29, s37")
        e("s_cselect_b32 s22, s30, s38")
        e(f"s_cmp_lt_u32 {sW}, {(6, 4, 3, 2)[P['pf_split']]}")
        e("s_cselect_b32 s22, s22, 0")
        if P["pf_n"] < 6:
            e("s_mov_b32 s26, s22")
            e(f"s_cmp_lt_u32 {sW}, {P['pf_n']}")
            e("s_cselect_b32 s22, s22, 0")
            e("s_cselect_b32 s26, 0, s26")
            e("s_mov_b32 s24, s20")
            e("s_mov_b32 s25, s21")
            e("s_mov_b32 s27, 0x00020000")
        e("s_mov_b32 s23, 0x00020000")
def p3w():
    e(f"s_lshl_b32 s46, {sW}, 12")
    for i in range(4):
        e(f"s_add_u32 m0, s46, {A_WO + i*1024}")
        e(f"s_add_u32 s45, s101, {i*8192}")
        dma(243 + (i & 1), SD, "s45", "nt")
    e(f"s_lshl_b32 s46, {sW}, 10")
    e(f"s_add_u32 m0, s46, {A_W2}")
    e(f"s_cmp_gt_u32 {sW}, 3")
    dma(245, SF, "s100", "nt")
    e("s_cbranch_scc1 L_a_now2")
    e(f"s_add_u32 m0, s46, {A_W2 + 8192}")
    e("s_add_u32 s45, s100, 65536")
    dma(245, SF, "s45", "nt")
    lab("L_a_now2")
if P["a_nat"]:
    a_addr()
    if P["w_pf"] == 7: e(f"buffer_load_dword v253, v255, s[20:23], s47 offen")
    if P["a_nat"] == 1:
        c("the bulk stream starts once the lines the weight CUs wait for are in")
        e("s_waitcnt vmcnt(0)")
        e("s_barrier")
    if P["w_pf"] == 8: e(f"buffer_load_dword v253, v255, s[20:23], s47 offen")
    a_loop()
else:
    a_loop()
    a_addr()
def mk_trs(ts):
    trs = []
    for t in ts:
        for tp in range(4):
            base = 96 + (tp*4 + t)*4
            areg = (16 if t < 2 else 24) + tp
            trs.append((base, areg, (t & 1)*32768))
            trs.append((base + 2, areg, (t & 1)*32768 + 16384))
    return trs
def q_check(ok):
    e("v_max3_u32 v4, v224, v225, v226")
    e("v_max3_u32 v5, v227, v228, v229")
    e("v_max3_u32 v4, v4, v230, v231")
    e("v_max_u32 v4, v4, v5")
    e("v_cmp_eq_u32 vcc, -1, v4")
    e(f"s_cbranch_vccz {ok}")
def q_load():
    e(f"buffer_load_dwordx4 v[224:227], v8, {SWS}, s63 offen sc1")
    e(f"buffer_load_dwordx4 v[228:231], v8, {SWS}, s63 offen offset:1024 sc1")
def q_write():
    if P["x_dbg"]: e("s_memrealtime s[70:71]")
    stamp(3)
    e("ds_write_b128 v28, v[224:227]")
    e("ds_write_b128 v29, v[228:231] offset:1024")
def a_reads(cond, skip):
    e(f"s_cmp_{cond}_u32 {sW}, {2*P['a_mid'] - 1}")
    e(f"s_cbranch_scc1 {skip}")
    for s in range(16):
        rd128(32 + 4*s, 12 + (s & 3), (s >> 2)*256)
    lab(skip)
def q_first(name):
    e("s_cmp_lg_u64 s[48:49], 0")
    e(f"s_cbranch_scc1 {name}")
    if P["a_qk"] < 63: e(f"s_waitcnt vmcnt({P['a_qk']})")
    q_load()
    lab(name)
def flags_in():
    c("Q rows may be read only after their producers have marked them empty")
    e("s_waitcnt vmcnt(4)")
    e(f"v_cmp_ne_u32 vcc, {sTAG}, v239")
    e("s_mov_b64 s[48:49], vcc")
e("s_waitcnt lgkmcnt(0)")
e(f"s_add_u32 {sTAG}, {sTAG}, 1")
e(f"s_mov_b32 {sCNT}, 0")
if P["a_mid"] == 3:
    flags_in()
    if P["q_when"] == 0: q_first("L_a_q1")
else:
    e("s_waitcnt vmcnt(9)")
stamp(8)
e("s_barrier")
c("the first quarters are in: their fragments go to registers while the rest lands")
a_reads("gt", "L_a_ar1")
for t_ in mk_trs(range(P["a_mid"])): tr(*t_)
if P["a_mid"] == 2: flags_in()
if P["q_when"] == 1 or P["a_mid"] == 2: q_first("L_a_q1")
e("s_waitcnt vmcnt(2)")
e("s_cmp_eq_u64 s[48:49], 0")
e("s_cbranch_scc1 L_a_land")
e("s_waitcnt vmcnt(0)")
lab("L_a_land")
if P["x_dbg"]: e("s_memrealtime s[68:69]")
stamp(2)
if P["x_exit"]: e("s_branch L_a_fin")
e("s_barrier")
e("s_cmp_lg_u64 s[48:49], 0")
e("s_cbranch_scc1 L_a_slow0")
e("s_waitcnt vmcnt(0)")
q_check("L_a_fast")
q_load()
lab("L_a_slow0")
a_reads("le", "L_a_ar2")
e("s_cmp_eq_u64 s[48:49], 0")
e("s_cbranch_scc1 L_a_q")
lab("L_a_flg")
e(f"buffer_load_dword v239, v238, {SWS}, s62 offen sc1")
e(f"s_add_u32 {sCNT}, {sCNT}, 1")
e("s_waitcnt vmcnt(0)")
e(f"v_cmp_ne_u32 vcc, {sTAG}, v239")
e("s_cbranch_vccz L_a_qre")
e(f"s_cmp_lt_u32 {sCNT}, {TMO}")
e("s_cbranch_scc1 L_a_flg")
lab("L_a_qre")
if P["bo_q"]: e(f"s_sleep {P['bo_q']}")
q_load()
lab("L_a_q")
e("s_waitcnt vmcnt(0)")
q_check("L_a_qok")
e(f"s_add_u32 {sCNT}, {sCNT}, 1")
e(f"s_cmp_lt_u32 {sCNT}, {TMO}")
e("s_cbranch_scc1 L_a_qre")
lab("L_a_qok")
q_write()
e("s_waitcnt lgkmcnt(0)")
e("s_branch L_a_qk")
lab("L_a_fast")
q_write()
e(f"s_cmp_gt_u32 {sW}, {2*P['a_mid'] - 1}")
e("s_cbranch_scc1 L_a_ar3")
e("s_waitcnt lgkmcnt(0)")
e("s_branch L_a_qk")
lab("L_a_ar3")
for s in range(16):
    rd128(32 + 4*s, 12 + (s & 3), (s >> 2)*256)
e("s_waitcnt lgkmcnt(15)")
lab("L_a_qk")
e("s_barrier")
stamp(4)
c("scores for key tile w; the transposed fragments of the last quarter follow the Q fragments")
trs = mk_trs(range(P["a_mid"], 4))
for s in range(12):
    rd128(160 + 4*s, 20 + (s & 3), (s >> 2)*256)
if P["hint"]:
    e(f"s_cmp_lg_u32 {sW}, 1")
    e("s_cbranch_scc1 L_a_noh")
    e(f"v_mov_b32 v5, {sTAG}")
    e(f"s_sub_u32 s45, s96, {ST}")
    e("s_lshr_b32 s45, s45, 3")
    e(f"s_add_u32 s45, s45, {HINT}")
    e("s_mov_b64 exec, 1")
    e(f"buffer_store_dword v5, v7, {SWS}, s45 offen sc1")
    e("s_mov_b64 exec, -1")
    lab("L_a_noh")
elif P["w_pf"] == 2:
    e(f"buffer_load_dword v253, v255, s[20:23], s47 offen")
issued = 0
for s in range(16):
    if s == 3 and P["hint"] and P["w_pf"] == 2:
        e(f"buffer_load_dword v253, v255, s[20:23], s47 offen")
    e(f"s_waitcnt lgkmcnt({(11 if s < 4 else 15 - s) + issued})")
    mfma(232, 32 + 4*s, 160 + 4*s, None if s == 0 else 232)
    if s < 4:
        rd128(160 + 4*(s + 12), 20 + (s & 3), 3*256)
    if 3 <= s < 15:
        n = min((s + 1) - issued, len(trs))
        for _ in range(n): tr(*trs.pop(0))
        issued += n
e("s_nop 7")
e("v_max3_f32 v4, v232, v233, v234")
e("v_max_f32 v4, v4, v235")
e("ds_max_f32 v30, v4")
n = len(trs)
for t_ in trs: tr(*t_)
e(f"s_waitcnt lgkmcnt({n})")
e("s_barrier")
stamp(5)
e("ds_read_b32 v4, v30")
e("s_waitcnt lgkmcnt(0)")
lab("L_a_sm")
e("v_mul_f32 v4, s97, v4")
for k in range(4):
    e(f"v_fma_f32 v{232+k}, v{232+k}, s97, -v4")
for k in range(4):
    e(f"v_exp_f32 v{232+k}, v{232+k}")
e("s_nop 0")
e("v_cvt_pk_bf16_f32 v160, v232, v233")
e("v_cvt_pk_bf16_f32 v161, v234, v235")
e("v_add_f32 v232, v232, v233")
e("v_add_f32 v234, v234, v235")
e("ds_write_b64 v31, v[160:161]")
e("v_add_f32 v232, v232, v234")
e("ds_write_b32 v254, v232")
e("s_waitcnt lgkmcnt(0)")
e("s_barrier")
stamp(6)
for t in range(4):
    rd128(160 + 4*t, 236, t*1024)
c("P.V for c range w; a finished tile is packed and staged under the next tile's MFMAs")
OW = (246, 247, 240, 241)
def o_pack(tp):
    e(f"v_cvt_pk_bf16_f32 v{192+2*tp}, v{176+4*tp}, v{177+4*tp}")
    e(f"v_cvt_pk_bf16_f32 v{193+2*tp}, v{178+4*tp}, v{179+4*tp}")
    e(f"ds_write_b64 v{OW[tp]}, v[{192+2*tp}:{193+2*tp}]")
if P["pvt"]:
    for t in range(4):
        e(f"s_waitcnt lgkmcnt({3 - t})")
        for tp in (0, 1):
            mfma(176 + 4*tp, 96 + (tp*4 + t)*4, 160 + 4*t, None if t == 0 else 176 + 4*tp)
    k = 0
    for t in range(4):
        for tp in (2, 3):
            mfma(176 + 4*tp, 96 + (tp*4 + t)*4, 160 + 4*t, None if t == 0 else 176 + 4*tp)
            k += 1
            if k == 6:
                e("s_nop 0"); o_pack(0)
            if k == 7: o_pack(1)
    e("s_nop 3")
    o_pack(2)
    e("s_nop 0")
    o_pack(3)
else:
    for t in range(4):
        e(f"s_waitcnt lgkmcnt({3 - t})")
        for tp in range(4):
            mfma(176 + 4*tp, 96 + (tp*4 + t)*4, 160 + 4*t, None if t == 0 else 176 + 4*tp)
    e("s_nop 4")
    for tp in range(4): o_pack(tp)
OST = ("sc1", "sc0 sc1", "sc1 nt", "sc0 sc1 nt")[P["o_st"]]
if P["st_asym"]:
    c("row checksums: every lane adds up its 8 dwords, the statistics wave adds the 8 parts of a row")
    e("v_add3_u32 v216, v192, v193, v194")
    e("v_add3_u32 v217, v195, v196, v197")
    e("v_add3_u32 v216, v216, v198, v199")
    e("v_add_u32 v216, v216, v217")
    e("ds_write_b32 v249, v216")
    e("ds_read_b128 v[208:211], v248")
    e("ds_read_b128 v[212:215], v248 offset:1024")
    e("s_add_u32 s45, s61, 0x80000")
    e(f"s_cmp_lt_u32 {sW}, 4")
    e("s_cbranch_scc1 L_a_ost")
    c("waves 4-7 finish last: they release the statistics wave before their own stores")
    e("s_waitcnt lgkmcnt(2)")
    e("s_barrier")
    lab("L_a_ost")
    e("s_waitcnt lgkmcnt(1)")
    e(f"buffer_store_dwordx4 v[208:211], v237, {SWS}, s61 offen {OST}")
    e("s_waitcnt lgkmcnt(0)")
    e(f"buffer_store_dwordx4 v[212:215], v237, {SWS}, s45 offen {OST}")
    e("s_cbranch_scc0 L_a_nost")
    e(f"s_cmp_eq_u32 {sW}, 0")
    e("s_cbranch_scc1 L_a_stat")
    e("s_barrier")
    e("s_branch L_a_nost")
else:
    e("ds_read_b128 v[208:211], v248")
    e("ds_read_b128 v[212:215], v248 offset:1024")
    c("row checksums: every lane adds up its 8 dwords, the statistics wave adds the 8 parts of a row")
    e("v_add3_u32 v216, v192, v193, v194")
    e("v_add3_u32 v217, v195, v196, v197")
    e("v_add3_u32 v216, v216, v198, v199")
    e("v_add_u32 v216, v216, v217")
    e("ds_write_b32 v249, v216")
    e("s_add_u32 s45, s61, 0x80000")
    e("s_waitcnt lgkmcnt(2)")
    e(f"buffer_store_dwordx4 v[208:211], v237, {SWS}, s61 offen {OST}")
    e("s_waitcnt lgkmcnt(1)")
    e(f"buffer_store_dwordx4 v[212:215], v237, {SWS}, s45 offen {OST}")
    e(f"s_cmp_eq_u32 {sW}, 0")
    e("s_cbranch_scc1 L_a_stat")
    e("s_waitcnt lgkmcnt(0)")
    e("s_barrier")
    e("s_branch L_a_nost")
lab("L_a_stat")
for k in range(4):
    e(f"ds_read2st64_b32 v[{200+2*k}:{201+2*k}], v242 offset0:{2*k} offset1:{2*k+1}")
e(f"v_mov_b32 v7, {sTAG}")
e("s_waitcnt lgkmcnt(0)")
e("v_add_f32 v200, v200, v201")
e("v_add_f32 v202, v202, v203")
e("v_add_f32 v204, v204, v205")
e("v_add_f32 v206, v206, v207")
e("v_add_f32 v200, v200, v202")
e("v_add_f32 v204, v204, v206")
e("v_add_f32 v5, v200, v204")
swap_reduce("add", 5, 200, 16)
swap_reduce("add", 5, 200, 32)
if P["st_x"]:
    e("v_lshrrev_b32 v242, 2, v2")
    e("v_lshlrev_b32 v242, 8, v242")
    e("v_lshl_add_u32 v242, v3, 6, v242")
    e("v_and_b32 v200, 3, v2")
    e("v_lshl_add_u32 v242, v200, 4, v242")
e("s_barrier")
for k in range(4):
    e(f"ds_read2_b32 v[{216+2*k}:{217+2*k}], v9 offset0:{32*k} offset1:{32*k+16}")
if P["st_sleep"]: e(f"s_sleep {P['st_sleep']}")
e("s_waitcnt lgkmcnt(2)")
e("v_add3_u32 v6, v216, v217, v218")
e("s_waitcnt lgkmcnt(0)")
e("v_add3_u32 v220, v220, v221, v222")
e("v_add3_u32 v6, v6, v219, v223")
e("v_add_u32 v6, v6, v220")
e(f"buffer_store_dwordx4 v[4:7], v{242 if P['st_x'] else 8}, {SWS}, s96 offen sc1")
lab("L_a_nost")
stamp(7)
if P["x_dbg"]: e("s_memrealtime s[72:73]")
if P["pf_n"] < 6 and P["pf_late"]: e(f"buffer_load_dword v253, v255, s[24:27], s47 offen")
p3w()
c("addresses of the output projection")
e("v_lshrrev_b32 v4, 2, v2")
e("v_and_b32 v5, 3, v2")
e("v_lshl_add_u32 v31, v3, 3, v4")
e("v_lshrrev_b32 v50, 1, v4")
e("v_and_b32 v51, 1, v3")
e("v_lshl_or_b32 v50, v51, 1, v50")
e(f"s_and_b32 s45, {sW}, 3")
e("v_xor_b32 v50, s45, v50")
e("v_lshlrev_b32 v50, 5, v50")
e("v_lshl_add_u32 v50, v5, 3, v50")
e("v_lshl_add_u32 v50, v31, 7, v50")
e("v_and_b32 v32, 1, v2")
e("v_lshrrev_b32 v36, 1, v2")
e("v_lshlrev_b32 v36, 3, v36")
e("v_lshl_add_u32 v36, v3, 1, v36")
e(f"s_lshl_b32 s45, {sW}, 6")
e("v_add_u32 v36, s45, v36")
e(f"v_mul_u32_u24 v38, {KBS}, v32")
e("v_add_u32 v36, v36, v38")
e("v_lshrrev_b32 v35, 1, v1")
e("v_lshl_add_u32 v35, v35, 3, v38")
e(f"s_and_b32 s45, {sW}, 1")
e("s_lshl_b32 s45, s45, 8")
e("v_add_u32 v35, s45, v35")
e("v_lshl_add_u32 v38, v3, 4, v38")
e("v_lshlrev_b32 v49, 3, v2")
e("v_lshl_add_u32 v49, v3, 1, v49")
e("s_lshl_b32 s100, s57, 10")
e("s_add_u32 s100, s100, s99")
e(f"buffer_load_ushort v180, v49, {SX}, s100 offen")
e("v_lshlrev_b32 v92, 12, v3")
e("v_lshl_add_u32 v92, v2, 4, v92")
e("v_lshlrev_b32 v93, 8, v2")
e("v_lshl_add_u32 v93, v3, 4, v93")
e(f"s_lshl_b32 s46, {sW}, 6")
e("v_add_u32 v93, s46, v93")
e("s_lshl_b32 s59, s98, 13")
e(f"s_lshl_b32 s46, {sX}, 9")
e("s_add_u32 s59, s59, s46")
e("s_lshl_b32 s46, s57, 8")
e("s_add_u32 s59, s59, s46")
e(f"s_add_u32 s59, s59, {OUTP}")
e(f"s_lshl_b32 s60, {sX}, 14")
e("s_lshl_b32 s47, s57, 13")
e("s_add_u32 s60, s60, s47")
if P["inl"]:
    e(f"s_and_b32 s47, {sW}, 1")
    e("s_lshl_b32 s47, s47, 12")
    e("s_add_u32 s60, s60, s47")
else:
    e("v_lshlrev_b32 v34, 10, v3")
    e("v_lshl_add_u32 v34, v2, 4, v34")
    e(f"s_lshr_b32 s47, {sW}, 2")
    e("s_lshl_b32 s47, s47, 12")
    e("s_add_u32 s60, s60, s47")
    e(f"s_and_b32 s47, {sW}, 3")
    e("s_lshl_b32 s47, s47, 8")
    e("s_add_u32 s60, s60, s47")
e(f"s_add_u32 s61, s60, {CPB}")
e(f"s_add_u32 s60, s60, {CPA}")
if P["stamps"] == 3:
    e("s_waitcnt vmcnt(7)")
    stamp(8)
    e("s_waitcnt vmcnt(0)")
    stamp(15)
e(f"s_cmp_lt_u32 {sW}, 4")
e("s_cbranch_scc1 L_a_nohg")
e(f"s_cmp_eq_u32 {sW}, 7")
e("s_cbranch_scc1 L_a_nohg")
c("waves 4-6: sum the 16 partials of 16 granules of h, SiLU")
e(f"s_cmp_ge_u32 {sX}, 6")
e("s_cselect_b32 s45, 10, 11")
e("s_lshl_b32 s45, s45, 3")
e("s_mul_i32 s46, s57, 48")
e("s_sub_u32 s45, s45, s46")
e(f"s_lshl_b32 s46, {sW}, 4")
e("s_sub_u32 s46, s46, 64")
e("v_add_u32 v60, s46, v2")
e("v_cmp_gt_u32 s[46:47], s45, v60")
e(f"s_lshl_b32 s48, {sX}, 15")
e("s_mul_i32 s49, s57, 768")
e("s_add_u32 s48, s48, s49")
e(f"s_lshl_b32 s49, {sW}, 8")
e("s_add_u32 s48, s48, s49")
e(f"s_add_u32 s48, s48, {HPA - 1024}")
e(f"s_add_u32 s49, s48, {HPB-HPA}")
e("v_lshlrev_b32 v60, 11, v3")
e("v_lshl_add_u32 v60, v2, 4, v60")
e("v_add_u32 v61, 0x2000, v60")
e("v_add_u32 v62, 0x4000, v60")
e("v_add_u32 v63, 0x6000, v60")
dual_poll4("hh", 64, [60, 61, 62, 63], "s48", "s49", "s[46:47]", lr=P["lr2"])
sum4_reduce(64)
round_bf16(64)
e("v_mul_f32 v65, 0xbfb8aa3b, v64")
e("v_exp_f32 v65, v65")
e("s_nop 0")
e("v_add_f32 v65, 1.0, v65")
e("v_rcp_f32 v65, v65")
e("s_nop 0")
e("v_mul_f32 v64, v64, v65")
e("v_cndmask_b32 v64, 0, v64, s[46:47]")
e("v_cvt_pk_bf16_f32 v64, v64, v64")
e(f"ds_write_b16 v36, v64 offset:{KB + 256}")
lab("L_a_nohg")
e("s_waitcnt vmcnt(0) lgkmcnt(0)")
stamp(9)
e("s_barrier")
e(f"s_cmp_gt_u32 {sW}, 3")
e("s_cbranch_scc1 L_a_nofrag")
for s in range(3):
    rd128(60 + 4*s, 38, KB + 512 + s*64)
    tr(144 + 4*s, 50, A_W2 + s*4096)
    tr(146 + 4*s, 50, A_W2 + s*4096 + 512)
for s in range(8):
    tr(112 + 4*s, 50, A_WO + s*4096)
    tr(114 + 4*s, 50, A_WO + s*4096 + 512)
e("s_waitcnt lgkmcnt(0)")
for s in range(3):
    mfma(176, 144 + 4*s, 60 + 4*s, None if s == 0 else 176)
if P["inl"]:
    e("s_branch L_a_noh25")
    lab("L_a_nofrag")
    e(f"s_cmp_gt_u32 {sW}, 5")
    e("s_cbranch_scc1 L_a_noh25")
    stamp(10)
    dual_poll4("h25", 64, [8, 8, 8, 8], "s60", "s61", lr=P["lr2"], offs=(0, 1024, 2048, 3072))
    stamp(11)
    if P["x_dbg"]: e("s_memrealtime s[74:75]")
    sum4(64)
    e("v_cvt_pk_bf16_f32 v64, v64, v65")
    e("v_cvt_pk_bf16_f32 v65, v66, v67")
    e(f"ds_write_b64 v35, v[64:65] offset:{KB}")
    e("s_waitcnt lgkmcnt(0)")
else:
    lab("L_a_nofrag")
    stamp(10)
    dual_poll("h25", 72, 34, "s60", "s61", lr=P["lr2"], bo=P["bo_h25"])
    stamp(11)
    unpack_granule(72)
    halving_reduce(72)
    e("v_cvt_pk_bf16_f32 v72, v72, v72")
    e(f"ds_write_b16 v36, v72 offset:{KB}")
    e("s_waitcnt lgkmcnt(0)")
lab("L_a_noh25")
e("s_barrier")
e(f"s_cmp_gt_u32 {sW}, 3")
e("s_cbranch_scc1 L_a_nop3b")
c("P3b: 64 output columns over two heads (the FFN part is already in the accumulator)")
for s in range(8):
    rd128(56 + 4*s, 38, KB + s*64)
for s in range(8):
    e(f"s_waitcnt lgkmcnt({7 - s})")
    mfma(176, 112 + 4*s, 56 + 4*s, 176)
e("s_nop 7")
pack_granule(88, 176)
e(f"s_mov_b64 exec, {sM2}")
e(f"ds_write_b128 v93, v[88:91] offset:{KB + 2048}")
e("s_mov_b64 exec, -1")
e("s_waitcnt lgkmcnt(0)")
lab("L_a_nop3b")
e("s_barrier")
e(f"s_cmp_lg_u32 {sW}, 4")
e("s_cbranch_scc1 L_a_fin")
e("s_mov_b32 exec_hi, 0")
rd128(88, 8, KB + 2048)
e(f"s_and_b32 s48, {sR}, 15")
e("s_lshl_b32 s48, s48, 12")
e(f"s_add_u32 s48, s48, {OUTP}")
e("s_waitcnt lgkmcnt(0)")
e(f"buffer_store_dwordx4 v[88:91], v92, {SWS}, s59 offen sc1")
e("s_mov_b64 exec, -1")
stamp(12)
e(f"s_cmp_lg_u32 {sX}, s98")
e("s_cbranch_scc1 L_a_fin")
c("reducer for (column slice ms, batch r&1): 16 partials")
if P["red_sleep"] == 99: e("s_waitcnt vmcnt(0)")
elif P["red_sleep"]:
    c("back off before the first poll: reading a line while it is being written slows the write down")
    e(f"s_sleep {P['red_sleep']}")
dual_poll4("red", 64, [8, 8, 8, 8], "s48", "s48", offs=(0, 1024, 2048, 3072))
stamp(13)
sum4_reduce(64)
e("v_lshlrev_b32 v180, 16, v180")
e("v_add_f32 v64, v64, v180")
e("v_cvt_pk_bf16_f32 v64, v64, v64")
e(f"buffer_store_short v64, v49, {SO}, s100 offen {'sc1' if P['out_sc1'] == 1 else 'sc0 sc1' if P['out_sc1'] == 2 else 'nt' if P['out_sc1'] == 3 else ''}")
e(f"s_cmpk_lg_u32 s2, {4 if P['xmap'] else 0x80}")
e("s_cbranch_scc1 L_a_fin")
e(f"v_mov_b32 v57, {sTAG}")
e("v_mov_b32 v58, 0")
e("s_mov_b64 exec, 1")
e(f"buffer_store_dword v57, v58, {SWS}, 0 offen sc1")
if P["x_amp"]:
    e("s_memrealtime s[66:67]")
    e("s_waitcnt lgkmcnt(0)")
    e(f"s_sub_u32 s45, s{P['x_amp']}, s64")
    e("s_lshl_b32 s45, s45, 2")
    e("s_add_u32 s45, s45, s66")
    lab("L_amp")
    e("s_memrealtime s[46:47]")
    e("s_waitcnt lgkmcnt(0)")
    e("s_sub_u32 s46, s46, s45")
    e("s_cmp_lt_i32 s46, 0")
    e("s_cbranch_scc1 L_amp")
elif P["x_dbg"]:
    e("s_load_dwordx2 s[20:21], s[0:1], 80")
    e("s_memrealtime s[66:67]")
    srd(20, 256)
    e("s_waitcnt lgkmcnt(0)")
    for k, r_ in enumerate((66, 68, 70, 72, 74)):
        e(f"s_sub_u32 s45, s{r_}, s64")
        e("v_mov_b32 v57, s45")
        e(f"buffer_store_dword v57, v58, s[20:23], 0 offen offset:{4*k}")
for _ in range(P["x_endsleep"]): e("s_sleep 127")
lab("L_a_fin")
stamp(14)
dump_stamps()
lab("L_end")
e("s_endpgm")
lab("L_codeend")
out.append('.section .rodata,"a"')
out.append(".p2align 6")
out.append(f".amdhsa_kernel {KN}")
out.append("""  .amdhsa_next_free_vgpr 256
  .amdhsa_next_free_sgpr 102
  .amdhsa_accum_offset 256
  .amdhsa_group_segment_fixed_size 0
  .amdhsa_kernarg_size 96
  .amdhsa_user_sgpr_count 2
  .amdhsa_user_sgpr_kernarg_segment_ptr 1
  .amdhsa_system_sgpr_workgroup_id_x 1
.end_amdhsa_kernel""")
open(sys.argv[1], "w").write("\n".join(out) + "\n")
```
